```python
import torch

def _softmax(x, axis=-1):
    return torch.softmax(x, dim=axis)
def _gelu(x):
    return torch.nn.functional.gelu(x, approximate="tanh")
def _silu(x):
    return torch.nn.functional.silu(x)
def _sigmoid(x):
    return torch.sigmoid(x)
def _layernorm(x, axis=-1, eps=1e-5):
    m = x.mean(dim=axis, keepdim=True)
    v = x.var(dim=axis, keepdim=True, unbiased=False)
    return (x - m) / torch.sqrt(v + eps)
def _scatter_add(tgt, idx, src, axis=0):
    return tgt.clone().index_add_(axis, idx, src)
def _segment_sum(src, seg, n):
    out = torch.zeros((n,) + src.shape[1:], dtype=src.dtype)
    return out.index_add_(0, seg, src)
def _pad(x, pw):
    flat = tuple(v for pair in reversed(pw) for v in pair)
    return torch.nn.functional.pad(x, flat)

kernel_name = 'sequential_preLN__spectral_gfnet__glu_gated_glu__prompt'

def setup_inputs():

    _w = (lambda a: (lambda t: t.to(torch.bfloat16) if t.is_floating_point() else t)(torch.as_tensor(a)))
    def _A_setup():
        B, S, D = 1, 2048, 576
        Df = D // 2 + 1
        return {
            "x": _w((lambda *s: torch.randn(*s, dtype=torch.bfloat16) * 0.05)(B, S, D)),
            "w_r": _w((lambda *s: torch.randn(*s, dtype=torch.bfloat16) * 0.4)(S, Df) * 0.02),
            "w_i": _w((lambda *s: torch.randn(*s, dtype=torch.bfloat16) * 0.4)(S, Df) * 0.02),
        }
    _A_in = _A_setup()

    def _B_setup():
        B, S, D, F = 1, 2048, 576, 4608
        return {
            "x": _w((lambda *s: torch.randn(*s, dtype=torch.bfloat16) * 0.05)(B, S, D)),
            "w_gate": _w((lambda *s: torch.randn(*s, dtype=torch.bfloat16) * 0.05)(D, F)),
            "w_up": _w((lambda *s: torch.randn(*s, dtype=torch.bfloat16) * 0.05)(D, F)),
            "w_down": _w((lambda *s: torch.randn(*s, dtype=torch.bfloat16) * 0.05)(F, D)),
        }
    _B_in = _B_setup()

    return {
        "A_x": _A_in["x"],
        "A_w_r": _A_in["w_r"],
        "A_w_i": _A_in["w_i"],
        "B_x": _B_in["x"],
        "B_w_gate": _B_in["w_gate"],
        "B_w_up": _B_in["w_up"],
        "B_w_down": _B_in["w_down"],
    }

def reference(A_x, A_w_r, A_w_i, B_x, B_w_gate, B_w_up, B_w_down):
    def _A_ref(x, w_r, w_i):
        B, S, D = x.shape
        X = (lambda x, axes=(-2,-1): torch.fft.rfft2(x.float(), dim=axes))(x, axes=(-2, -1))
        W = w_r + 1j * w_i
        X = X * W
        y = (lambda x, s, axes=(-2,-1): torch.fft.irfft2(x, s=s, dim=axes).to(torch.bfloat16))(X, (S, D), axes=(-2, -1))
        return y

    def _B_ref(x, w_gate, w_up, w_down):
        g = torch.einsum("bsd,df->bsf", x, w_gate)
        u = torch.einsum("bsd,df->bsf", x, w_up)
        h = _sigmoid(g) * u
        return torch.einsum("bsf,fd->bsd", h, w_down)

    x = A_x
    h = x + _A_ref(_layernorm(x, axis=-1), A_w_r, A_w_i)
    h2 = h + _B_ref(_layernorm(h, axis=-1), B_w_gate, B_w_up, B_w_down)
    return h2
```

```python
class Asm:
    def __init__(self): self.lines=[]
    def __call__(self, s):
        for l in s.split('\n'):
            l=l.strip()
            if l: self.lines.append(('    '+l) if not l.endswith(':') else l)
    def raw(self,s): self.lines.append(s)
    def text(self): return '\n'.join(self.lines)+'\n'
def v(i,n=1): return f'v{i}' if n==1 else f'v[{i}:{i+n-1}]'
def a(i,n=1): return f'a{i}' if n==1 else f'a[{i}:{i+n-1}]'
def s(i,n=1): return f's{i}' if n==1 else f's[{i}:{i+n-1}]'
def kernel_head(name):
    return f'.globl {name}\n.p2align 8\n.type {name},@function\n{name}:\n'
def kernel_desc(name, vgpr, accum, sgpr=102, extra=''):
    return f'''.amdhsa_kernel {name}
  .amdhsa_next_free_vgpr {vgpr}
  .amdhsa_next_free_sgpr {sgpr}
  .amdhsa_accum_offset {accum}
  .amdhsa_group_segment_fixed_size 0
  .amdhsa_kernarg_size 80
  .amdhsa_user_sgpr_count 2
  .amdhsa_user_sgpr_kernarg_segment_ptr 1
  .amdhsa_system_sgpr_workgroup_id_x 1
{extra}.end_amdhsa_kernel
'''
def assemble_file(launches, bodies, descs, header=''):
    out=header
    for n,g,b,l in launches:
        out+=f'; @launch kernel={n} grid=({g},1,1) block=({b},1,1) lds={l}\n'
    out+='.amdgcn_target "amdgcn-amd-amdhsa--gfx950"\n.text\n'
    for n,body in bodies:
        out+=kernel_head(n)+body
    out+='.section .rodata,"a"\n'
    for d in descs:
        out+='.p2align 6\n'+d
    return out
```

```python
import sys, math, struct; sys.path.insert(0,'dev')
from asmlib import *
from k4 import srd, WS_T, WS_WP, WS_Y, WS_H, WS_L2F, WS_P, WS_BYTES, WS_STAMP
def fh(x): return '0x%08x'%struct.unpack('<I',struct.pack('<f',x))[0]
WPB=9344
OOB=0x7ff00000
def pr(r): return f'v[{r}:{r+1}]'
def allreduce32(A, r, t):
    for m in ('quad_perm:[1,0,3,2]','quad_perm:[2,3,0,1]','row_half_mirror','row_mirror'):
        A(f's_nop 1\nv_add_f32_dpp v{r}, v{r}, v{r} {m} row_mask:0xf bank_mask:0xf')
    A(f'v_mov_b32 v{t}, v{r}\ns_nop 1\nv_permlane16_swap_b32 v{t}, v{r}\ns_nop 0\nv_add_f32 v{r}, v{r}, v{t}')
def rot_offsets(A, q, o, t):
    A(f'v_lshlrev_b32 v{t}, 1, v{q}\nv_mul_u32_u24 v{t+1}, 57, v{t}\nv_lshrrev_b32 v{t+1}, 9, v{t+1}\nv_mul_u32_u24 v{t+1}, 9, v{t+1}\nv_sub_u32 v{t}, v{t+1}, v{t}')
    A(f'v_lshlrev_b32 v{t}, 7, v{t}')
    for j in range(9):
        A(f'v_add_u32 v{o+j}, {128*j}, v{t}\nv_add_u32 v{t+1}, {128*j+1152}, v{t}\nv_min_u32 v{o+j}, v{o+j}, v{t+1}')
K9=dict(c1=math.cos(2*math.pi/9),c2=math.cos(4*math.pi/9),c4=math.cos(8*math.pi/9),s1=math.sin(2*math.pi/9),s2=math.sin(4*math.pi/9),s4=math.sin(8*math.pi/9),h3=math.sqrt(3)/2,mh=-0.5)
def k9_load(A, sb):
    m={}
    for i,(k,val) in enumerate(K9.items()):
        A(f's_mov_b32 s{sb+i}, {fh(val)}'); m[k]=sb+i
    return m
def sc(sreg, pos, n):
    base=sreg&~1; hi=sreg&1
    sel=[0]*n; selh=[1]*n; sel[pos]=hi; selh[pos]=hi
    return f's[{base}:{base+1}]', sel, selh
def lst(x): return '['+','.join(map(str,x))+']'
def pkfma(A,d,x,sreg,c,neg=False):
    o,sel,selh=sc(sreg,1,3); n='[1,0,0]' if neg else '[0,0,0]'
    A(f'v_pk_fma_f32 {pr(d)}, {pr(x)}, {o}, {pr(c)} op_sel:{lst(sel)} op_sel_hi:{lst(selh)} neg_lo:{n} neg_hi:{n}')
def pkmul(A,d,x,sreg,neg=False):
    o,sel,selh=sc(sreg,1,2); n='[1,0]' if neg else '[0,0]'
    A(f'v_pk_mul_f32 {pr(d)}, {pr(x)}, {o} op_sel:{lst(sel)} op_sel_hi:{lst(selh)} neg_lo:{n} neg_hi:{n}')
def pkadd(A,d,x,y,neg=False):
    n='[0,1]' if neg else '[0,0]'
    A(f'v_pk_add_f32 {pr(d)}, {pr(x)}, {pr(y)} neg_lo:{n} neg_hi:{n}')
def trig(kind,n):
    n%=9
    if kind=='c':
        return ({1:'c1',2:'c2',4:'c4'}[min(n,9-n)],False)
    return ({1:'s1',2:'s2',4:'s4'}[min(n,9-n)], n>4)
def dft9_core(A,K,x0,s,d,R,I,t,negI):
    a_,e_,S_=t
    pkfma(A,a_,s[3],K['mh'],x0)
    pkmul(A,e_,d[3],K['h3'],neg=negI)
    pkadd(A,S_,s[1],s[2]);
    for k in (1,2,4):
        c,_=trig('c',k); pkfma(A,R[k],s[1],K[c],a_)
    pkadd(A,S_,S_,s[4])
    for k in (1,2,4):
        c,ng=trig('s',k)
        o,sel,selh=sc(K[c],1,3); n1=int(ng^negI); n3=int(k==2)
        A(f'v_pk_fma_f32 {pr(I[k])}, {pr(d[1])}, {o}, {pr(e_)} op_sel:{lst(sel)} op_sel_hi:{lst(selh)} neg_lo:[{n1},0,{n3}] neg_hi:[{n1},0,{n3}]')
    pkadd(A,a_,x0,s[3])
    pkadd(A,e_,d[1],d[2],neg=True)
    for b in (2,4):
        for k in (1,2,4):
            c,_=trig('c',b*k); pkfma(A,R[k],s[b],K[c],R[k])
        for k in (1,2,4):
            c,ng=trig('s',b*k); pkfma(A,I[k],d[b],K[c],I[k],neg=ng^negI)
    pkadd(A,e_,e_,d[4])
    pkfma(A,R[3],S_,K['mh'],a_)
    pkadd(A,R[0],a_,S_)
    pkmul(A,I[3],e_,K['h3'],neg=negI)
def layernorm(A,P,D,t,sMASK,sINV,keep_packed=None,unpack=True):
    pkadd(A,t,P[0],P[1]); pkadd(A,t+2,P[2],P[3]); pkadd(A,t+4,P[4],P[5]); pkadd(A,t,t,P[6]); pkadd(A,t+2,t+2,P[7]); pkadd(A,t+4,t+4,P[8])
    pkadd(A,t,t,t+2); pkadd(A,t,t,t+4)
    A(f'v_add_f32 v{t}, v{t}, v{t+1}')
    allreduce32(A,t,t+1)
    A(f'v_mul_f32 v{t}, s{sINV}, v{t}')
    for b in range(9): A(f'v_pk_add_f32 {pr(D[b])}, {pr(P[b])}, {pr(t)} op_sel_hi:[1,0] neg_lo:[0,1] neg_hi:[0,1]')
    A(f'v_pk_mul_f32 {pr(t+2)}, {pr(D[0])}, {pr(D[0])}\nv_pk_mul_f32 {pr(t+4)}, {pr(D[1])}, {pr(D[1])}')
    for b in range(2,9): A(f'v_pk_fma_f32 {pr(t+2+2*(b&1))}, {pr(D[b])}, {pr(D[b])}, {pr(t+2+2*(b&1))}')
    pkadd(A,t+2,t+2,t+4)
    A(f'v_add_f32 v{t+2}, v{t+2}, v{t+3}')
    A(f'v_cvt_pk_bf16_f32 v{t}, v{t}, v{t}\nv_and_b32 v{t}, s{sMASK}, v{t}')
    allreduce32(A,t+2,t+3)
    for b in range(9): A(f'v_pk_add_f32 {pr(D[b])}, {pr(P[b])}, {pr(t)} op_sel_hi:[1,0] neg_lo:[0,1] neg_hi:[0,1]')
    A(f'v_mul_f32 v{t+2}, s{sINV}, v{t+2}\nv_cvt_pk_bf16_f32 v{t+2}, v{t+2}, v{t+2}\nv_and_b32 v{t+2}, s{sMASK}, v{t+2}')
    A(f'v_add_f32 v{t+2}, {fh(1e-5)}, v{t+2}\nv_cvt_pk_bf16_f32 v{t+2}, v{t+2}, v{t+2}\nv_and_b32 v{t+2}, s{sMASK}, v{t+2}')
    A(f'v_sqrt_f32 v{t+2}, v{t+2}')
    for b in range(9): A(f'v_cvt_pk_bf16_f32 v{D[b]}, v{D[b]}, v{D[b]+1}')
    A(f'v_cvt_pk_bf16_f32 v{t+2}, v{t+2}, v{t+2}\nv_and_b32 v{t+2}, s{sMASK}, v{t+2}\nv_rcp_f32 v{t+2}, v{t+2}')
    for b in range(9): A(f'v_and_b32 v{D[b]+1}, s{sMASK}, v{D[b]}\nv_lshlrev_b32 v{D[b]}, 16, v{D[b]}')
    for b in range(9): A(f'v_pk_mul_f32 {pr(D[b])}, {pr(D[b])}, {pr(t+2)} op_sel_hi:[1,0]')
    for b in range(9):
        dst=keep_packed[b] if keep_packed else D[b]
        A(f'v_cvt_pk_bf16_f32 v{dst}, v{D[b]}, v{D[b]+1}')
    if unpack:
        for b in range(9):
            src=keep_packed[b] if keep_packed else D[b]
            A(f'v_lshlrev_b32 v{P[b]}, 16, v{src}\nv_and_b32 v{P[b]+1}, s{sMASK}, v{src}')
def const64(A, lane, sW, C, S, NS, t, sSGN):
    A(f'v_and_b32 v{t}, 15, v{lane}\ns_lshl_b32 s31, s{sW}, 4\nv_add_u32 v{t}, s31, v{t}')
    A(f'v_and_b32 v{t+3}, 1, v{t}\nv_mul_lo_u32 v{t+3}, v{t+3}, s{sSGN}')
    A(f'v_cvt_f32_u32 v{t}, v{t}\nv_mul_f32 v{t}, {fh(1/64)}, v{t}')
    A(f'v_lshrrev_b32 v{t+1}, 4, v{lane}\nv_lshlrev_b32 v{t+1}, 3, v{t+1}\nv_cvt_f32_u32 v{t+1}, v{t+1}\nv_mul_f32 v{t+1}, v{t+1}, v{t}')
    a0=t+4
    for k in range(8): A(f'v_fmamk_f32 v{a0+k}, v{t}, {fh(float(k))}, v{t+1}')
    for k in range(8): A(f'v_fract_f32 v{a0+k}, v{a0+k}')
    for k in range(8): A(f'v_cos_f32 v{a0+8+k}, v{a0+k}')
    for k in range(8): A(f'v_sin_f32 v{a0+k}, v{a0+k}')
    for j in range(4): A(f'v_cvt_pk_bf16_f32 v{C+j}, v{a0+8+2*j}, v{a0+9+2*j}')
    for j in range(4): A(f'v_cvt_pk_bf16_f32 v{S+j}, v{a0+2*j}, v{a0+1+2*j}')
    for j in range(4): A(f'v_xor_b32 v{C+4+j}, v{t+3}, v{C+j}\nv_xor_b32 v{S+4+j}, v{t+3}, v{S+j}')
    for j in range(8): A(f'v_xor_b32 v{NS+j}, s{sSGN}, v{S+j}')
def mfma16(A,d,a_,b_,first): A(f'v_mfma_f32_16x16x32_bf16 {v(d,4)}, {v(a_,4)}, {v(b_,4)}, {"0" if first else v(d,4)}')
def code_prefetch(A,name,vt,vd,sp=40):
    A(f's_getpc_b64 s[{sp}:{sp+1}]\nv_lshlrev_b32 v{vt}, 7, v0\nv_min_u32 v{vt}, {name}_end-{name}-128, v{vt}\nglobal_load_dword v{vd}, v{vt}, s[{sp}:{sp+1}]')
class Stamps:
    def __init__(s,A,on,idx): s.A=A; s.on=on; s.n=0; s.idx=idx
    def __call__(s):
        if s.on: s.A(f's_memtime s[{60+2*s.n}:{61+2*s.n}]'); s.n+=1
    def start(s):
        if s.on: s.A('s_memrealtime s[92:93]'); s()
    def finish(s,sws,sw):
        if not s.on: return
        A=s.A; A('s_waitcnt vmcnt(0)'); s()
        A('s_memrealtime s[90:91]\ns_waitcnt lgkmcnt(0)')
        for i in range(s.n): A(f'v_writelane_b32 v1, s{60+2*i}, {i}')
        A('v_writelane_b32 v1, s90, 15\nv_writelane_b32 v1, s92, 14')
        A(f's_lshl_b32 s44, s2, 2\ns_add_u32 s44, s44, s{sw}\ns_lshl_b32 s44, s44, 8\ns_add_u32 s44, s44, {WS_STAMP+s.idx*0x100000}')
        A(f'v_mbcnt_lo_u32_b32 v2, -1, 0\nv_mbcnt_hi_u32_b32 v2, -1, v2\nv_lshlrev_b32 v2, 2, v2\nbuffer_store_dword v1, v2, s[{sws}:{sws+3}], s44 offen')

def gen_k1(name='k1_kernel', stamp=False):
    A=Asm(); ST=Stamps(A,stamp,1)
    RS=1312
    A(f's_cmp_ge_u32 s2, 512\ns_cbranch_scc1 {name}_end')
    A('s_load_dwordx4 s[32:35], s[0:1], 0\ns_load_dwordx2 s[36:37], s[0:1], 16\ns_load_dwordx2 s[38:39], s[0:1], 72')
    ST.start()
    code_prefetch(A,name,1,127)
    A('v_lshrrev_b32 v1, 6, v0\ns_nop 0\nv_readfirstlane_b32 s3, v1')
    A(f's_cmp_ge_u32 s2, 256\ns_cbranch_scc1 {name}_wt')
    A('v_and_b32 v0, 63, v0')
    sMASK,sSGN,sINV=24,26,25
    A(f's_mov_b32 s{sMASK}, 0xffff0000\ns_mov_b32 s{sSGN}, 0x80008000\ns_mov_b32 s{sINV}, {fh(1/576)}')
    Q,ROW=2,3; O=4
    A(f'v_and_b32 v{Q}, 31, v0\nv_lshrrev_b32 v{ROW}, 5, v0\ns_lshl_b32 s4, s3, 1\nv_add_u32 v{ROW}, s4, v{ROW}')
    rot_offsets(A,Q,O,14)
    A(f's_lshr_b32 s4, s2, 5\ns_lshl_b32 s4, s4, 8\ns_and_b32 s5, s2, 31\ns_add_u32 s4, s4, s5\ns_mul_i32 s4, s4, 1152')
    A(f'v_mul_u32_u24 v14, {32*1152}, v{ROW}\nv_lshl_add_u32 v14, v{Q}, 2, v14')
    for j in range(9): A(f'v_add_u32 v{O+j}, v14, v{O+j}')
    A('s_waitcnt lgkmcnt(0)')
    srd(A,8,32,33,2359296); srd(A,12,38,39,WS_BYTES)
    X=16
    for j in range(9): A(f'buffer_load_dword v{X+j}, v{O+j}, s[8:11], s4 offen')
    ST()
    C,S,NS=28,36,44
    const64(A,0,3,C,S,NS,56,sSGN)
    K=k9_load(A,48)
    WA,RA=4,5
    A(f'v_mul_u32_u24 v{WA}, {RS}, v{ROW}\nv_lshl_add_u32 v{WA}, v{Q}, 2, v{WA}')
    A(f'v_and_b32 v14, 7, v0\nv_mul_u32_u24 v{RA}, {RS}, v14\nv_lshrrev_b32 v15, 4, v0\nv_lshl_add_u32 v{RA}, v15, 4, v{RA}')
    A(f'v_bfe_u32 v14, v0, 3, 1\nv_lshl_add_u32 v6, v14, 8, v{RA}')
    A(f'v_and_b32 v14, 15, v0\ns_lshl_b32 s5, s3, 4\nv_add_u32 v14, s5, v14')
    A('v_mul_u32_u24 v7, 9, v14\nv_lshrrev_b32 v13, 5, v0\nv_lshl_add_u32 v13, v13, 6, v7')
    A('v_and_b32 v15, 16, v0')
    A(f's_mul_i32 s6, s2, 9216\ns_add_u32 s6, s6, {WS_T}')
    for mu in range(2):
        A(f'v_add_u32 v56, {64*(1+2*mu)}, v13\nv_subrev_u32 v57, 576, v56\nv_min_u32 v56, v56, v57')
        A(f'v_sub_u32 v57, 576, v56\nv_cmp_lt_u32 vcc, v57, v56\nv_min_u32 v56, v56, v57\nv_mov_b32 v57, s{sSGN}')
        A(f'v_cndmask_b32 v{11+mu}, 0, v57, vcc\nv_lshl_add_u32 v{8+mu}, v56, 5, v15')
    A('v_lshl_add_u32 v10, v7, 5, v15')
    A(f'v_mov_b32 v57, {OOB}')
    A('v_cmp_lt_u32 vcc, 31, v14\ns_nop 1\nv_cndmask_b32 v10, v10, v57, vcc')
    A('v_lshl_add_u32 v56, v14, 6, v0\nv_cmp_eq_u32 vcc, 16, v56\ns_nop 1\nv_cndmask_b32 v10, v10, v57, vcc')
    A('v_cmp_lt_u32 vcc, 31, v0\ns_nop 1\nv_cndmask_b32 v10, v10, v57, vcc')
    A('v_cmp_eq_u32 vcc, 0x800, v56\ns_nop 1\nv_cndmask_b32 v10, v10, 16, vcc')
    P=[56+2*b for b in range(9)]; D=[74+2*b for b in range(9)]; T=92
    A('s_waitcnt vmcnt(0)')
    ST()
    for j in range(9): A(f'v_lshlrev_b32 v{P[j]}, 16, v{X+j}\nv_and_b32 v{P[(j+1)%9]+1}, s{sMASK}, v{X+j}')
    layernorm(A,P,D,T,sMASK,sINV)
    s_={b:D[b-1] for b in range(1,5)}; d_={b:D[b+3] for b in range(1,5)}
    for b in range(1,5): pkadd(A,s_[b],P[b],P[9-b]); pkadd(A,d_[b],P[b],P[9-b],neg=True)
    R={k:P[1+k] for k in range(4)}; R[4]=D[8]; I={k:P[4+k] for k in range(1,5)}
    dft9_core(A,K,P[0],s_,d_,R,I,(T,T+2,T+4),True)
    slot={0:R[0]}
    for k in range(1,5): slot[2*k-1]=R[k]; slot[2*k]=I[k]
    for sg in range(9): A(f'v_cvt_pk_bf16_f32 v{X+sg}, v{slot[sg]}, v{slot[sg]+1}')
    for sg in range(9): A(f'ds_write_b32 v{WA}, v{X+sg} offset:{sg*128}')
    A('s_waitcnt lgkmcnt(0)\ns_barrier')
    ST()
    F=56
    for mu in range(2):
        for part in range(2):
            for t in range(2): A(f'ds_read_b128 {v(F+16*mu+8*part+4*t,4)}, v6 offset:{(1+4*mu+part)*128+64*t}')
    for t in range(2): A(f'ds_read_b128 {v(F+32+4*t,4)}, v{RA} offset:{64*t}')
    ACC=96
    for mu in range(2):
        fr,fi=F+16*mu,F+16*mu+8
        A(f's_waitcnt lgkmcnt({6-4*mu})')
        for t in range(2):
            mfma16(A,ACC+8*mu,fr+4*t,C+4*t,t==0); mfma16(A,ACC+8*mu+4,fi+4*t,C+4*t,t==0)
        for t in range(2):
            mfma16(A,ACC+8*mu,fi+4*t,S+4*t,False); mfma16(A,ACC+8*mu+4,fr+4*t,NS+4*t,False)
    A('s_waitcnt lgkmcnt(0)')
    for t in range(2):
        mfma16(A,ACC+16,F+32+4*t,C+4*t,t==0); mfma16(A,ACC+20,F+32+4*t,NS+4*t,t==0)
    for g in range(3):
        o=16+4*g; ac=ACC+8*g
        if g==2: A('s_nop 3')
        for j in range(4): A(f'v_cvt_pk_bf16_f32 v{o+j}, v{ac+2*j}, v{ac+2*j+1}')
        if g<2: A(f'v_xor_b32 v{o+2}, v{11+g}, v{o+2}\nv_xor_b32 v{o+3}, v{11+g}, v{o+3}')
        A(f's_nop 1\nv_permlane16_swap_b32 v{o}, v{o+2}\nv_permlane16_swap_b32 v{o+1}, v{o+3}')
        A(f'buffer_store_dwordx4 {v(o,4)}, v{8+g}, s[12:15], s6 offen')
    ST.finish(12,3)
    A('s_endpgm')
    A(f'{name}_wt:')
    A('s_sub_u32 s4, s2, 256\ns_lshr_b32 s5, s4, 2\ns_and_b32 s6, s4, 3\ns_lshl_b32 s6, s6, 8\ns_add_u32 s5, s5, s6\ns_mul_i32 s5, s5, 578')
    A(f's_mul_i32 s7, s4, {WPB}\ns_add_u32 s7, s7, {WS_WP}')
    A('v_lshlrev_b32 v2, 1, v0\nv_lshlrev_b32 v3, 5, v0')
    A(f'v_add_u32 v4, 512, v2\nv_add_u32 v5, 8192, v3\nv_mov_b32 v6, {OOB}\nv_cmp_lt_u32 vcc, 32, v0\ns_nop 1\nv_cndmask_b32 v4, v4, v6, vcc\nv_cndmask_b32 v5, v5, v6, vcc')
    A('s_waitcnt lgkmcnt(0)')
    srd(A,8,34,35,2048*578); srd(A,16,36,37,2048*578); srd(A,12,38,39,WS_BYTES)
    def wload(va,base):
        for part,sr in ((0,8),(1,16)):
            for e in range(8):
                t,r=e>>2,e&3
                A(f's_add_u32 s20, s5, {(1024*t+64*r)*578}')
                A(f'buffer_load_ushort v{base+8*part+e}, v{va}, s[{sr}:{sr+3}], s20 offen')
    def wpack(base,dst):
        for j in range(8): A(f'v_lshl_or_b32 v{dst+j}, v{base+2*j+1}, 16, v{base+2*j}')
    wload(2,24)
    A(f's_cmp_lg_u32 s3, 0\ns_cbranch_scc1 {name}_wt1')
    wload(4,40)
    A('s_waitcnt vmcnt(0)'); wpack(40,16)
    A('buffer_store_dwordx4 v[16:19], v5, s[12:15], s7 offen\nbuffer_store_dwordx4 v[20:23], v5, s[12:15], s7 offen offset:16')
    A(f'{name}_wt1:')
    A('s_waitcnt vmcnt(0)'); wpack(24,8)
    A('buffer_store_dwordx4 v[8:11], v3, s[12:15], s7 offen\nbuffer_store_dwordx4 v[12:15], v3, s[12:15], s7 offen offset:16')
    A(f'{name}_end:\ns_endpgm')
    return A.text(), kernel_desc(name,128,128), 8*RS

def gen_k2(name='k2_kernel', stamp=False):
    A=Asm(); ST=Stamps(A,stamp,2)
    US=160; UB=8192
    A(f's_cmp_ge_u32 s2, 289\ns_cbranch_scc1 {name}_end')
    A('s_load_dwordx2 s[38:39], s[0:1], 72')
    ST.start()
    code_prefetch(A,name,1,167)
    A('v_lshrrev_b32 v1, 6, v0\ns_nop 0\nv_readfirstlane_b32 s3, v1\nv_and_b32 v0, 63, v0')
    sMASK,sSGN=24,26
    A(f's_mov_b32 s{sMASK}, 0xffff0000\ns_mov_b32 s{sSGN}, 0x80008000')
    A('s_and_b32 s4, s2, 7\ns_mul_i32 s4, s4, 36\ns_lshr_b32 s5, s2, 3\ns_add_u32 s4, s4, s5')
    A('s_cmp_eq_u32 s2, 288\ns_cselect_b32 s4, 288, s4')
    A('s_lshl_b32 s5, s4, 5\ns_cmp_eq_u32 s2, 288\ns_cselect_b32 s5, 16, s5')
    A('s_cmp_lt_u32 s5, 32\ns_cselect_b32 s6, 1, 0')
    A('s_mul_i32 s7, s4, 7282\ns_lshr_b32 s7, s7, 16\ns_mul_i32 s7, s7, 9\ns_sub_u32 s7, s4, s7\ns_cmp_ge_u32 s7, 5\ns_cselect_b32 s27, 0x80008000, 0')
    N,G=2,3
    A(f'v_and_b32 v{N}, 15, v0\nv_lshrrev_b32 v{G}, 4, v0')
    A(f's_and_b32 s20, s3, 1\ns_lshl_b32 s20, s20, 7\ns_lshr_b32 s21, s3, 1\ns_lshl_b32 s21, s21, 4\ns_add_u32 s20, s20, s21')
    A(f'v_lshl_add_u32 v4, v{G}, 5, v{N}\nv_add_u32 v4, s20, v4\nv_mul_u32_u24 v4, 9216, v4')
    A(f's_cmp_eq_u32 s6, 1\ns_cselect_b32 s21, {OOB}, 16\nv_add_u32 v5, s21, v4')
    A(f's_add_u32 s22, s5, {WS_T}')
    A(f's_lshl_b32 s20, s3, 6\nv_lshl_add_u32 v6, v{N}, 2, v{G}\nv_add_u32 v6, s20, v6\nv_mul_u32_u24 v6, {WPB}, v6')
    A(f's_lshl_b32 s23, s4, 5\ns_add_u32 s23, s23, {WS_WP}')
    A('s_waitcnt lgkmcnt(0)')
    srd(A,12,38,39,WS_BYTES)
    A('s_lshl_b32 s20, s3, 11\ns_mov_b32 m0, s20\ns_nop 0\nbuffer_load_dwordx4 v4, s[12:15], s22 offen lds')
    A('s_add_u32 m0, s20, 1024\ns_nop 0\nbuffer_load_dwordx4 v5, s[12:15], s22 offen lds')
    WR,WI=8,12
    A(f'buffer_load_dwordx4 {v(WR,4)}, v6, s[12:15], s23 offen\nbuffer_load_dwordx4 {v(WI,4)}, v6, s[12:15], s23 offen offset:16')
    ST()
    C,S,NS=16,24,32
    const64(A,0,3,C,S,NS,100,sSGN)
    C3,S3,NS3=40,48,56
    t=100
    A(f'v_cvt_f32_u32 v{t}, v{N}\nv_mul_f32 v{t}, {fh(1/32)}, v{t}\nv_lshlrev_b32 v{t+1}, 2, v{G}\nv_cvt_f32_u32 v{t+2}, v{t+1}\nv_mul_f32 v{t+1}, v{t+2}, v{t}')
    a0=t+4
    for k in range(8): A(f'v_fmamk_f32 v{a0+k}, v{t}, {fh(float(16*(k>>2)+(k&3)))}, v{t+1}')
    for k in range(8): A(f'v_fract_f32 v{a0+k}, v{a0+k}')
    for k in range(8): A(f'v_cos_f32 v{a0+8+k}, v{a0+k}')
    for k in range(8): A(f'v_sin_f32 v{a0+k}, v{a0+k}')
    for j in range(4): A(f'v_cvt_pk_bf16_f32 v{C3+j}, v{a0+8+2*j}, v{a0+9+2*j}')
    for j in range(4): A(f'v_cvt_pk_bf16_f32 v{S3+j}, v{a0+2*j}, v{a0+1+2*j}')
    for j in range(4): A(f'v_xor_b32 v{C3+4+j}, 0x80000000, v{C3+j}\nv_xor_b32 v{S3+4+j}, 0x80000000, v{S3+j}')
    for j in range(8): A(f'v_xor_b32 v{NS3+j}, s{sSGN}, v{S3+j}')
    TC,TS,UC,USn=64,72,80,88
    A(f's_lshl_b32 s20, s3, 4\nv_add_u32 v{t}, s20, v{N}\nv_cvt_f32_u32 v{t}, v{t}\nv_mul_f32 v{t}, {fh(1/2048)}, v{t}\nv_mul_f32 v{t+1}, v{t+2}, v{t}')
    for k in range(8): A(f'v_fmamk_f32 v{TS+k}, v{t}, {fh(float(16*(k>>2)+(k&3)))}, v{t+1}')
    for k in range(8): A(f'v_cos_f32 v{TC+k}, v{TS+k}')
    for k in range(8): A(f'v_sin_f32 v{TS+k}, v{TS+k}')
    A(f'v_cvt_f32_u32 v{t+3}, s20\nv_add_f32 v{t+2}, v{t+2}, v{t+3}')
    for nu in range(2):
        A(f'v_add_u32 v{t}, {16*nu}, v{N}\nv_cvt_f32_u32 v{t}, v{t}\nv_mul_f32 v{t}, {fh(1/2048)}, v{t}\nv_mul_f32 v{t+1}, v{t+2}, v{t}')
        for r in range(4): A(f'v_fmamk_f32 v{USn+4*nu+r}, v{t}, {fh(float(r))}, v{t+1}')
    for k in range(8): A(f'v_cos_f32 v{UC+k}, v{USn+k}')
    for k in range(8): A(f'v_sin_f32 v{USn+k}, v{USn+k}')
    A(f's_mov_b32 s28, {fh(1/(2048*288))}')
    for k in range(0,16,2): pkmul(A,UC+k,UC+k,28)
    A(f'v_lshlrev_b32 v4, 4, v0')
    A(f'v_mul_u32_u24 v5, {US}, v{N}\nv_lshl_add_u32 v6, v{G}, 4, v5\nv_lshl_add_u32 v5, v{G}, 3, v5\ns_lshl_b32 s20, s3, 5\nv_add_u32 v5, s20, v5')
    A(f'v_lshrrev_b32 v7, 1, v{G}\nv_lshl_add_u32 v7, v7, 5, v{N}\ns_lshl_b32 s20, s3, 6\nv_add_u32 v7, s20, v7\nv_mul_u32_u24 v7, 9216, v7')
    A(f'v_and_b32 v{t}, 1, v{G}\nv_mul_lo_u32 v{t}, v{t}, s21\nv_add_u32 v7, v7, v{t}')
    A(f's_add_u32 s22, s5, {WS_Y}\ns_add_u32 s23, s22, {16*9216}')
    A('s_waitcnt vmcnt(2)\ns_barrier')
    ST()
    F=100
    for mu in range(2):
        for part in range(2):
            for tt in range(2): A(f'ds_read_b128 {v(F+16*mu+8*part+4*tt,4)}, v4 offset:{(2*mu+tt)*2048+part*1024}')
    AR,AI=132,140
    for mu in range(2):
        fr,fi=F+16*mu,F+16*mu+8
        A(f's_waitcnt lgkmcnt({4-4*mu})')
        for tt in range(2):
            mfma16(A,AR+4*mu,fr+4*tt,C+4*tt,tt==0); mfma16(A,AI+4*mu,fi+4*tt,C+4*tt,tt==0)
        for tt in range(2):
            mfma16(A,AR+4*mu,fi+4*tt,S+4*tt,False); mfma16(A,AI+4*mu,fr+4*tt,NS+4*tt,False)
    X,Y_=148,156
    def cmul(c,s_,conj):
        for k in range(0,8,2):
            A(f'v_pk_mul_f32 {pr(X+k)}, {pr(AR+k)}, {pr(c+k)}\nv_pk_mul_f32 {pr(Y_+k)}, {pr(AI+k)}, {pr(c+k)}')
        n1='[0,0,0]' if conj else '[1,0,0]'; n2='[1,0,0]' if conj else '[0,0,0]'
        for k in range(0,8,2):
            A(f'v_pk_fma_f32 {pr(X+k)}, {pr(AI+k)}, {pr(s_+k)}, {pr(X+k)} neg_lo:{n1} neg_hi:{n1}\nv_pk_fma_f32 {pr(Y_+k)}, {pr(AR+k)}, {pr(s_+k)}, {pr(Y_+k)} neg_lo:{n2} neg_hi:{n2}')
    BR,BI=100,104
    def pack():
        for j in range(4): A(f'v_cvt_pk_bf16_f32 v{BR+j}, v{X+2*j}, v{X+2*j+1}\nv_cvt_pk_bf16_f32 v{BI+j}, v{Y_+2*j}, v{Y_+2*j+1}')
    A('s_nop 7')
    cmul(TC,TS,True); pack()
    A('s_nop 1')
    for nu in range(2):
        mfma16(A,AR+4*nu,C3+4*nu,BR,True); mfma16(A,AI+4*nu,C3+4*nu,BI,True)
    for nu in range(2):
        mfma16(A,AR+4*nu,S3+4*nu,BI,False); mfma16(A,AI+4*nu,NS3+4*nu,BR,False)
    A('s_waitcnt vmcnt(0)')
    for j in range(4):
        A(f'v_lshlrev_b32 v{TC+2*j}, 16, v{WR+j}\nv_and_b32 v{TC+2*j+1}, s{sMASK}, v{WR+j}\nv_lshlrev_b32 v{TS+2*j}, 16, v{WI+j}\nv_and_b32 v{TS+2*j+1}, s{sMASK}, v{WI+j}')
    cmul(TC,TS,False); pack()
    A('s_nop 1')
    for nu in range(2):
        mfma16(A,AR+4*nu,BR,C3+4*nu,True); mfma16(A,AI+4*nu,BI,C3+4*nu,True)
    for nu in range(2):
        mfma16(A,AR+4*nu,BI,NS3+4*nu,False); mfma16(A,AI+4*nu,BR,S3+4*nu,False)
    A('s_nop 7')
    cmul(UC,USn,False); pack()
    for nu in range(2):
        A(f'ds_write_b64 v5, {v(BR+2*nu,2)} offset:{UB+nu*16*US}\nds_write_b64 v5, {v(BI+2*nu,2)} offset:{UB+32*US+nu*16*US}')
    A('s_waitcnt lgkmcnt(0)\ns_barrier')
    ST()
    for nu in range(2):
        for part in range(2):
            for tt in range(2): A(f'ds_read_b128 {v(F+16*nu+8*part+4*tt,4)}, v6 offset:{UB+part*32*US+nu*16*US+64*tt}')
    for nu in range(2):
        fr,fi=F+16*nu,F+16*nu+8
        A(f's_waitcnt lgkmcnt({4-4*nu})')
        for tt in range(2):
            mfma16(A,AR+4*nu,C+4*tt,fr+4*tt,tt==0); mfma16(A,AI+4*nu,C+4*tt,fi+4*tt,tt==0)
        for tt in range(2):
            mfma16(A,AR+4*nu,NS+4*tt,fi+4*tt,False); mfma16(A,AI+4*nu,S+4*tt,fr+4*tt,False)
    for nu in range(2):
        o=X+4*nu
        if nu==1: A('s_nop 1')
        A(f'v_cvt_pk_bf16_f32 v{o}, v{AR+4*nu}, v{AR+4*nu+1}\nv_cvt_pk_bf16_f32 v{o+1}, v{AR+4*nu+2}, v{AR+4*nu+3}')
        A(f'v_cvt_pk_bf16_f32 v{o+2}, v{AI+4*nu}, v{AI+4*nu+1}\nv_cvt_pk_bf16_f32 v{o+3}, v{AI+4*nu+2}, v{AI+4*nu+3}')
        A(f'v_xor_b32 v{o+2}, s27, v{o+2}\nv_xor_b32 v{o+3}, s27, v{o+3}')
        A(f's_nop 1\nv_permlane16_swap_b32 v{o}, v{o+2}\nv_permlane16_swap_b32 v{o+1}, v{o+3}')
        A(f'buffer_store_dwordx4 {v(o,4)}, v7, s[12:15], s{22+nu} offen')
    ST.finish(12,3)
    A(f'{name}_end:\ns_endpgm')
    return A.text(), kernel_desc(name,168,168), UB+64*US

def gen_k3(name='k3_kernel', stamp=False, layout='A32'):
    A=Asm(); ST=Stamps(A,stamp,3)
    RS=2304+16; TB=9216; IB=TB+8*RS
    A(f's_cmp_ge_u32 s2, 256\ns_cbranch_scc1 {name}_end')
    A('s_load_dwordx2 s[32:33], s[0:1], 0\ns_load_dwordx2 s[38:39], s[0:1], 72')
    ST.start()
    code_prefetch(A,name,1,159)
    A('v_lshrrev_b32 v1, 6, v0\nv_lshlrev_b32 v158, 4, v0\nv_readfirstlane_b32 s3, v1\nv_and_b32 v0, 63, v0')
    sMASK,sSGN,sINV=24,26,25
    A(f's_mov_b32 s{sMASK}, 0xffff0000\ns_mov_b32 s{sSGN}, 0x80008000\ns_mov_b32 s{sINV}, {fh(1/576)}')
    TID16=158
    A(f's_mul_i32 s6, s2, 9216\ns_add_u32 s6, s6, {WS_Y}\ns_lshl_b32 s20, s3, 10')
    A('s_waitcnt lgkmcnt(0)')
    srd(A,8,32,33,2359296); srd(A,12,38,39,WS_BYTES)
    A(f's_mov_b32 m0, s20\ns_add_u32 s7, s6, 4096\nbuffer_load_dwordx4 v{TID16}, s[12:15], s6 offen lds')
    A(f's_add_u32 m0, s20, 4096\ns_nop 0\nbuffer_load_dwordx4 v{TID16}, s[12:15], s7 offen lds')
    A(f's_cmp_lg_u32 s3, 0\ns_cbranch_scc1 {name}_l1\ns_mov_b32 m0, 8192\ns_add_u32 s7, s6, 8192\nbuffer_load_dwordx4 v{TID16}, s[12:15], s7 offen lds\n{name}_l1:')
    Q,ROW=2,3; O=4
    A(f'v_and_b32 v{Q}, 31, v0\nv_lshrrev_b32 v{ROW}, 5, v0\ns_lshl_b32 s4, s3, 1\nv_add_u32 v{ROW}, s4, v{ROW}')
    rot_offsets(A,Q,O,14)
    A(f's_lshr_b32 s4, s2, 5\ns_lshl_b32 s4, s4, 8\ns_and_b32 s5, s2, 31\ns_add_u32 s4, s4, s5\ns_mul_i32 s4, s4, 1152')
    A(f'v_mul_u32_u24 v14, {32*1152}, v{ROW}\nv_lshl_add_u32 v14, v{Q}, 2, v14')
    X=16
    for j in range(9): A(f'v_add_u32 v15, v14, v{O+j}\nbuffer_load_dword v{X+j}, v15, s[8:11], s4 offen')
    ST()
    A(f'v_lshrrev_b32 v14, 2, v{Q}\nv_xor_b32 v15, v14, v{ROW}\nv_lshlrev_b32 v15, 4, v15\nv_lshl_add_u32 v15, v14, 7, v15\nv_and_b32 v14, 3, v{Q}\nv_lshl_add_u32 v15, v14, 2, v15\nv_add_u32 v15, {IB}, v15')
    for j in range(9): A(f'v_lshl_add_u32 v{O+j}, v{O+j}, 3, v15')
    C,S,NS=28,36,44
    const64(A,0,3,C,S,NS,100,sSGN)
    K=k9_load(A,48)
    C0,NS0=52,56
    for j in range(1,4): A(f'v_mov_b32 v{C0+j}, v{C+j}\nv_mov_b32 v{NS0+j}, v{NS+j}')
    A(f'v_and_b32 v14, s{sMASK}, v{C}\nv_or_b32 v14, 0x3f00, v14\nv_and_b32 v15, s{sMASK}, v{NS}\nv_and_b32 v13, 1, v0\nv_lshl_or_b32 v15, v13, 15, v15\nv_or_b32 v15, 0x3f00, v15')
    A(f'v_cmp_gt_u32 vcc, 16, v0\ns_nop 1\nv_cndmask_b32 v{C0}, v{C}, v14, vcc\nv_cndmask_b32 v{NS0}, v{NS}, v15, vcc')
    RA=60
    A('v_lshrrev_b32 v13, 4, v0\nv_bfe_u32 v14, v0, 2, 2\nv_lshl_add_u32 v13, v13, 3, v14\nv_mul_u32_u24 v13, 9, v13')
    A('v_and_b32 v14, 1, v0\nv_lshlrev_b32 v14, 3, v14')
    for q in range(2): A(f'v_add_u32 v15, {36*q}, v13\nv_lshl_add_u32 v{RA+8+q}, v15, 5, v14')
    A('v_bfe_u32 v15, v0, 1, 1\nv_lshl_add_u32 v13, v15, 6, v13')
    for mu in range(2):
        for t in range(2):
            for q in range(2):
                r=RA+4*mu+2*t+q
                A(f'v_add_u32 v{r}, {9*(32*t+4*q)+64*(1+2*mu)}, v13\nv_subrev_u32 v15, 576, v{r}\nv_min_u32 v{r}, v{r}, v15\nv_sub_u32 v15, 576, v{r}\nv_min_u32 v{r}, v{r}, v15\nv_lshl_add_u32 v{r}, v{r}, 5, v14')
    A(f'v_and_b32 v13, 7, v0\nv_mul_u32_u24 v72, {RS}, v13\nv_lshrrev_b32 v13, 4, v0\nv_lshl_add_u32 v72, v13, 4, v72\ns_lshl_b32 s21, s3, 6\ns_add_u32 s21, s21, {TB}\nv_add_u32 v72, s21, v72')
    A('v_bfe_u32 v13, v0, 3, 1\nv_lshl_add_u32 v70, v13, 9, v72')
    A(f'v_mul_u32_u24 v71, {RS}, v{ROW}\nv_lshl_add_u32 v71, v{Q}, 3, v71\nv_add_u32 v71, {TB}, v71')
    A(f'v_lshrrev_b32 v13, 7, v{TID16}\nv_bfe_u32 v14, v{TID16}, 4, 3\nv_and_b32 v15, 7, v13\nv_xor_b32 v14, v14, v15\nv_lshlrev_b32 v14, 4, v14')
    if layout=='A32':
        A('v_lshl_add_u32 v73, v13, 9, v14'); RND=32*512
        A('s_lshr_b32 s21, s2, 2\ns_mul_i32 s21, s21, 36864\ns_and_b32 s22, s2, 3\ns_lshl_b32 s22, s22, 7\ns_add_u32 s21, s21, s22')
    else:
        A('v_lshrrev_b32 v15, 2, v13\nv_lshl_add_u32 v14, v15, 11, v14\nv_and_b32 v15, 3, v13\nv_lshl_add_u32 v73, v15, 8, v14'); RND=8*2048
        A('s_lshr_b32 s21, s2, 2\ns_mul_i32 s21, s21, 36864\ns_bfe_u32 s22, s2, 0x10001\ns_lshl_b32 s22, s22, 10\ns_add_u32 s21, s21, s22\ns_and_b32 s22, s2, 1\ns_lshl_b32 s22, s22, 7\ns_add_u32 s21, s21, s22')
    A('s_waitcnt vmcnt(9)\ns_barrier')
    ST()
    F=100
    for mu in range(2):
        for part in range(2):
            for t in range(2):
                for q in range(2): A(f'ds_read_b64_tr_b16 {v(F+16*mu+8*part+4*t+2*q,2)}, v{RA+4*mu+2*t+q} offset:{16*part}')
        if mu==0: A('s_waitcnt lgkmcnt(3)')
    for part in range(2):
        for q in range(2): A(f'ds_read_b64_tr_b16 {v(F+32+4*part+2*q,2)}, v{RA+8+q} offset:{16*part}')
    ACC=76
    for mu in range(2):
        fr,fi=F+16*mu,F+16*mu+8
        A(f's_waitcnt lgkmcnt({12-8*mu})')
        for t in range(2):
            mfma16(A,ACC+8*mu,C+4*t,fr+4*t,t==0); mfma16(A,ACC+8*mu+4,C+4*t,fi+4*t,t==0)
        for t in range(2):
            mfma16(A,ACC+8*mu,NS+4*t,fi+4*t,False); mfma16(A,ACC+8*mu+4,S+4*t,fr+4*t,False)
    A('s_waitcnt lgkmcnt(0)')
    mfma16(A,ACC+16,C0,F+32,True); mfma16(A,ACC+16,NS0,F+36,False)
    for mu in range(2):
        if mu==1: A('s_nop 4')
        for part in range(2): A(f'ds_write_b128 v70, {v(ACC+8*mu+4*part,4)} offset:{(1+4*mu+part)*256}')
    A(f's_nop 4\nds_write_b128 v72, {v(ACC+16,4)}')
    A('s_waitcnt lgkmcnt(0)\ns_barrier')
    ST()
    TT=[100+2*sg for sg in range(9)]
    for sg in range(9): A(f'ds_read_b64 {pr(TT[sg])}, v71 offset:{sg*256}')
    U={b:118+2*b for b in range(5)}; V={b:126+2*b for b in range(1,5)}; T=136
    A('s_waitcnt lgkmcnt(0)')
    dft9_core(A,K,TT[0],{k:TT[2*k-1] for k in range(1,5)},{k:TT[2*k] for k in range(1,5)},U,V,(T,T+2,T+4),False)
    Yb={0:U[0]}
    for b in range(1,5):
        Yb[b]=TT[b]; Yb[9-b]=TT[9-b]
        pkadd(A,Yb[b],U[b],V[b],neg=True); pkadd(A,Yb[9-b],U[b],V[b])
    P=[28+2*b for b in range(9)]; D=[76+2*b for b in range(9)]
    for j in range(9): A(f'v_cvt_pk_bf16_f32 v{D[j]}, v{Yb[j]}, v{Yb[(j+1)%9]+1}')
    A('s_waitcnt vmcnt(0)')
    for j in range(9):
        A(f'v_and_b32 v{D[j]+1}, s{sMASK}, v{D[j]}\nv_lshlrev_b32 v{D[j]}, 16, v{D[j]}\nv_lshlrev_b32 v{P[j]}, 16, v{X+j}\nv_and_b32 v{P[j]+1}, s{sMASK}, v{X+j}')
    for j in range(9): pkadd(A,P[j],P[j],D[j])
    for j in range(9): A(f'v_cvt_pk_bf16_f32 v{X+j}, v{P[j]}, v{P[j]+1}')
    for j in range(9): A(f'ds_write_b32 v{O+j}, v{X+j}')
    for j in range(9): A(f'v_lshlrev_b32 v{P[j]}, 16, v{X+j}\nv_and_b32 v{P[j]+1}, s{sMASK}, v{X+j}')
    L=[100+j for j in range(9)]
    layernorm(A,P,D,T,sMASK,sINV,keep_packed=L,unpack=False)
    for j in range(9): A(f'ds_write_b32 v{O+j}, v{L[j]} offset:9216')
    A('s_waitcnt lgkmcnt(0)\ns_barrier')
    ST()
    for im in range(2):
        for rd in range(2): A(f'ds_read_b128 {v(28+8*im+4*rd,4)}, v{TID16} offset:{IB+im*9216+rd*4096}')
    A(f's_cmp_lg_u32 s3, 0\ns_cbranch_scc1 {name}_l2')
    for im in range(2): A(f'ds_read_b128 {v(44+4*im,4)}, v{TID16} offset:{IB+im*9216+8192}')
    A('s_waitcnt lgkmcnt(0)')
    for im,base in ((1,WS_L2F),(0,WS_H)):
        A(f's_add_u32 s22, s21, {base+2*RND}\nbuffer_store_dwordx4 {v(44+4*im,4)}, v73, s[12:15], s22 offen')
    A(f'{name}_l2:\ns_waitcnt lgkmcnt(0)')
    for im,base in ((1,WS_L2F),(0,WS_H)):
        for rd in range(2): A(f's_add_u32 s22, s21, {base+rd*RND}\nbuffer_store_dwordx4 {v(28+8*im+4*rd,4)}, v73, s[12:15], s22 offen')
    ST.finish(12,3)
    A(f'{name}_end:\ns_endpgm')
    return A.text(), kernel_desc(name,160,160), IB+2*9216
```

```python
import sys; sys.path.insert(0,'dev')
from asmlib import *
WS_T=0x0; WS_WP=0x400000; WS_Y=0x800000; WS_H=0xC00000; WS_L2F=0x1000000; WS_P=0x1400000; WS_STAMP=0x4000000
WS_BYTES=0x10000000
def srd(A, r, lo, hi, nbytes):
    A(f's_mov_b32 s{r}, s{lo}\ns_mov_b32 s{r+1}, s{hi}\ns_mov_b32 s{r+2}, {nbytes}\ns_mov_b32 s{r+3}, 0x20000')

def gen_k4(name='k4_kernel', D=5, R=40, B=9, B0=4, P0=32, rate0=2, rate=2, stamp=False, store_mod='', valu_budget=6, prefetch_code=True, dma=True, dovalu=True, nobar=False):
    A=Asm()
    V_LANE=0
    vRB=[[2,3,4],[5,6,7]]
    vRH=[8,9,10]
    vWF,vWH,vWD,vWD8,vL2,vP=11,12,13,14,15,16
    vT=17
    FR=24; NF=D+1
    ACC=[48,112]
    HH=176
    PK=248
    assert FR+4*NF<=48
    sWg,sWu,sWd,sWS=8,12,16,20
    sW1K,sTMP,sNL2E=28,29,30
    A(f's_cmp_ge_u32 s2, 256\ns_cbranch_scc1 {name}_end')
    A('s_load_dwordx4 s[32:35], s[0:1], 32\ns_load_dwordx2 s[36:37], s[0:1], 48\ns_load_dwordx2 s[38:39], s[0:1], 72')
    nst=[0]
    def do_stamp():
        if stamp:
            i=nst[0]; nst[0]+=1
            return [f's_memtime s[{60+2*i}:{61+2*i}]']
        return []
    for l in do_stamp(): A(l)
    if stamp: A('s_memrealtime s[92:93]')
    vm=[]
    if prefetch_code:
        A(f's_getpc_b64 s[40:41]\nv_lshlrev_b32 v17, 7, v0')
        A(f'v_min_u32 v18, {name}_end-{name}-256, v17\nglobal_load_dword v254, v18, s[40:41]'); vm.append('pf')
        A(f'v_add_u32 v17, 0x8000, v17\nv_min_u32 v18, {name}_end-{name}-256, v17\nglobal_load_dword v255, v18, s[40:41]'); vm.append('pf')
    A('v_lshrrev_b32 v1, 6, v0\ns_nop 0\nv_readfirstlane_b32 s3, v1\nv_and_b32 v0, 63, v0')
    A('s_and_b32 s4, s2, 7\ns_lshl_b32 s4, s4, 1\ns_bfe_u32 s5, s2, 0x10003\ns_add_u32 s4, s4, s5')
    A('s_lshr_b32 s6, s2, 4')
    A(f's_lshl_b32 s{sW1K}, s3, 10')
    A(f's_mov_b32 s{sNL2E}, 0xbfb8aa3b')
    A('s_mul_i32 s7, s4, 288')
    A('s_lshl_b32 s42, s5, 5\ns_add_u32 s42, s42, s7')
    A('s_xor_b32 s43, s5, 1\ns_lshl_b32 s43, s43, 8\ns_add_u32 s43, s43, s7')
    A('v_lshrrev_b32 v17, 3, v0\ns_lshl_b32 s44, s3, 3\nv_add_u32 v17, s44, v17')
    A('v_bfe_u32 v18, v0, 4, 1\nv_lshlrev_b32 v18, 2, v18\nv_and_b32 v19, 7, v0\nv_xor_b32 v18, v18, v19\nv_lshlrev_b32 v18, 4, v18')
    A(f'v_mul_u32_u24 v19, 9216, v17\nv_add_u32 v19, v19, v18\ns_lshl_b32 s44, s42, 1\nv_add_u32 v{vWF}, s44, v19')
    A(f'v_mul_u32_u24 v19, 1152, v17\nv_add_u32 v19, v19, v18\ns_mul_i32 s44, s42, 1152\nv_add_u32 v{vWD}, s44, v19\ns_mul_i32 s44, s43, 1152\nv_add_u32 v{vWD8}, s44, v19')
    A('v_lshrrev_b32 v17, 2, v0\ns_lshl_b32 s44, s3, 4\nv_add_u32 v17, s44, v17\nv_and_b32 v18, 3, v0\nv_lshlrev_b32 v18, 4, v18')
    A(f'v_mul_u32_u24 v19, 9216, v17\nv_add_u32 v19, v19, v18\ns_lshl_b32 s44, s43, 1\nv_add_u32 v{vWH}, s44, v19')
    A(f's_lshl_b32 s44, s6, 2\ns_add_u32 s44, s44, s3\ns_mul_i32 s45, s44, 36864\nv_lshlrev_b32 v17, 4, v0\nv_add_u32 v{vL2}, s45, v17')
    A(f's_mul_i32 s46, s4, 2359296\ns_add_u32 s46, s46, {WS_P}\nv_add_u32 v{vP}, s46, v{vL2}')
    A('s_waitcnt lgkmcnt(0)')
    srd(A,sWg,32,33,5308416); srd(A,sWu,34,35,5308416); srd(A,sWd,36,37,5308416); srd(A,sWS,38,39,WS_BYTES)
    units=[]; mf=[]
    def addunit(srdreg,voff,soff,mfs):
        u=len(units); units.append((srdreg,voff,soff))
        for m in mfs:
            m['unit']=u; mf.append(m)
    for b in range(4):
        acc=ACC[b&1]
        for i in range(18):
            for mat,sr in ((0,sWg),(1,sWu)):
                addunit(sr,vWF,b*128+i*32*9216,[dict(acc=acc+32*mat+16*tau,first=(i==0 and s_==0),bop=a(4*(2*i+s_),4),rb=vRB[tau],o0=s_*2048,o1=s_*2048+512,ln=(2*i+s_ if b==0 else None)) for s_ in range(2) for tau in range(2)])
    for mat,sr in ((0,sWg),(1,sWu)):
        for i in range(9):
            addunit(sr,vWH,i*64*9216,[dict(acc=ACC[0]+32*mat,first=(i==0 and s_==0),bop=a(4*(4*i+s_),4),rb=vRH,o0=s_*1024,o1=s_*1024+256,ln=None) for s_ in range(4)])
    PH2=len(mf)
    OACC=[ACC[1],ACC[1]+32]
    for p in range(9):
        for tau in range(9):
            addunit(sWd,(vWD if tau<8 else vWD8),(tau*32*1152 if tau<8 else 0)+p*128,
                [dict(acc=OACC[p&1]+16*nt,first=(tau==0 and s_==0),bop=v(HH+8*tau+4*s_,4),rb=vRB[nt],o0=s_*2048,o1=s_*2048+1024,ln=None,hh=tau) for s_ in range(2) for nt in range(2)])
    NM=len(mf); NU=len(units)
    assert NM==972 and NU==243
    A('v_lshrrev_b32 v17, 5, v0\nv_bfe_u32 v18, v0, 2, 2\nv_bfe_u32 v19, v0, 4, 1\nv_and_b32 v20, 3, v0')
    A('v_lshl_add_u32 v21, v17, 3, v18')
    A('v_lshlrev_b32 v22, 5, v19\nv_lshl_add_u32 v22, v20, 3, v22')
    A(f'v_lshl_add_u32 v{vRH[0]}, v21, 6, v22')
    A(f'v_lshl_add_u32 v23, v21, 7, v22\nv_lshrrev_b32 v21, 1, v18\nv_lshlrev_b32 v21, 6, v21\nv_add_u32 v{vRB[0][0]}, v23, v21\nv_xor_b32 v{vRB[1][0]}, 64, v{vRB[0][0]}')
    A('v_and_b32 v21, 1, v20\nv_lshrrev_b32 v23, 1, v20\nv_lshl_add_u32 v21, v21, 1, v23\nv_sub_u32 v21, v21, v20\nv_lshlrev_b32 v21, 3, v21\nv_lshlrev_b32 v23, 9, v17\nv_sub_u32 v1, v21, v23')
    for rb in (vRB[0],vRB[1],vRH):
        A(f'v_add_u32 v{rb[1]}, 0x10000, v{rb[0]}\nv_add_u32 v{rb[2]}, 0x20000, v{rb[0]}')
    ops=[]
    for i in range(18): ops+= [('D',2*i),('D',2*i+1),('L',2*i),('L',2*i+1)]
    ops+=[('D',u) for u in range(36,NU)]
    def emit_op(op):
        k,u=op
        vm.append(op)
        if k=='D':
            sr,vo,so=units[u]
            if not dma:
                vm.pop(); return []
            return [f's_add_u32 m0, s{sW1K}, {(u%R)*4096}', f's_mov_b32 s{sTMP}, {so}', f'buffer_load_dwordx4 v{vo}, s[{sr}:{sr+3}], s{sTMP} offen lds']
        else:
            return [f's_mov_b32 s{sTMP}, {WS_L2F+(u>>2)*4096}', f'buffer_load_dwordx4 {a(4*u,4)}, v{vL2}, s[{sWS}:{sWS+3}], s{sTMP} offen offset:{(u&3)*1024}']
    def vmwait(pred):
        last=-1
        for i,t in enumerate(vm):
            if pred(t): last=i
        if last<0: return []
        n=len(vm)-1-last
        if n>=63: return []
        return [f's_waitcnt vmcnt({n})']
    k=0
    while k<P0:
        for l in emit_op(ops[k]): A(l)
        k+=1
    gs=[]; u=0
    while u<NU:
        gs.append(u); u+= (B0 if u<36 else B)
    gset={g:(gs[i+1] if i+1<len(gs) else NU) for i,g in enumerate(gs)}
    free_limit=-1
    def reads(x):
        m=mf[x]; pos=(m['unit']%R)*4096; fr=FR+4*(x%NF); out=[]
        for q,o in enumerate((m['o0'],m['o1'])):
            off=pos+o; out.append(f'ds_read_b64_tr_b16 v[{fr+2*q}:{fr+2*q+1}], v{m["rb"][off>>16]} offset:{off&0xffff}')
        return out
    def barrier_before_reads(x, cur):
        nonlocal free_limit
        m=mf[x]; u=m['unit']
        if x%4==0 and u in gset:
            end=gset[u]
            out=[]
            nonlocal k
            while any(op[0]=='D' and op[1]<end for op in ops[k:]):
                assert ops[k][0]=='L' or ops[k][1]-R<=free_limit or ops[k][1]<R, (ops[k],free_limit)
                out+=emit_op(ops[k]); k+=1
            out+=vmwait(lambda t:t[0]=='D' and t[1]<end)
            if not nobar: out.append('s_barrier')
            free_limit=max(free_limit,(cur+1)//4-1)
            return out
        return []
    vq=[]
    def glu_tasks(gap, g, u_, hh):
        out=[]
        for c in range(0,16,4):
            rs=range(c,c+4)
            out+=[(f'v_mul_f32 v{g+i}, s{sNL2E}, v{g+i}',1) for i in rs]
            out+=[(f'v_exp_f32 v{g+i}, v{g+i}',2) for i in rs]
            out+=[(f'v_add_f32 v{g+i}, 1.0, v{g+i}',1) for i in rs]
            out+=[(f'v_rcp_f32 v{g+i}, v{g+i}',2) for i in rs]
            out+=[(f'v_mul_f32 v{g+i}, v{g+i}, v{u_+i}',1) for i in rs]
            out+=[(f'v_cvt_pk_bf16_f32 v{hh+(c>>1)+j}, v{g+c+2*j}, v{g+c+2*j+1}',1) for j in range(2)]
        return [(gap,t,c) for t,c in out]
    HAZ=3
    tasks=[]
    for b in range(4):
        last=144*b+143
        for tau in range(2):
            tasks+=[(g,t,c,('hh',2*b+tau)) for g,t,c in glu_tasks(last+HAZ,ACC[b&1]+16*tau,ACC[b&1]+32+16*tau,HH+8*(2*b+tau))]
    tasks+=[(g,t,c,('hh',8)) for g,t,c in glu_tasks(PH2-1+HAZ,ACC[0],ACC[0]+32,HH+64)]
    for p in range(9):
        last=PH2+36*p+35
        for nt in range(2):
            o=OACC[p&1]+16*nt
            for be in range(2):
                pk=PK+4*be
                for j in range(4): tasks.append((last+HAZ,f'v_cvt_pk_bf16_f32 v{pk+j}, v{o+8*be+2*j}, v{o+8*be+2*j+1}',1,('st',p)))
                tasks.append((last+HAZ,('store',pk,(2*p+nt)*2048,be*1024),2,('st',p)))
    if not dovalu: tasks=[t for t in tasks if t[3][0]=='st']
    ti=0
    def deadline(t):
        kind,i=t[3]
        if kind=='hh': return [288,288,432,432,576,576,PH2,PH2,PH2+32][i]
        return PH2+36*(i+2)
    def emit_task(t):
        if isinstance(t[1],tuple):
            _,pk,so,io=t[1]; vm.append(('S',0))
            return [f's_mov_b32 s{sTMP}, {so}', f'buffer_store_dwordx4 v[{pk}:{pk+3}], v{vP}, s[{sWS}:{sWS+3}], s{sTMP} offen offset:{io} {store_mod}']
        return [t[1]]
    for l in do_stamp(): A(l)
    for x in range(D):
        for l in barrier_before_reads(x,-1): A(l)
        for l in reads(x): A(l)
    for l in do_stamp(): A(l)
    ninstr_since={}
    for x in range(NM):
        m=mf[x]; pre=[]
        forced=[i for i in range(ti,len(tasks)) if deadline(tasks[i])<=x+1]
        if forced:
            assert tasks[forced[-1]][0]<=x+HAZ
            if tasks[forced[-1]][0]>x-1: pre.append('s_nop 11')
            while ti<=forced[-1]:
                pre+=emit_task(tasks[ti]); ti+=1
        if m['ln'] is not None and (x%2==0): pre+=vmwait(lambda t:t==('L',m['ln']))
        if x%2==0 or D<3:
            hi=min(NM-1,x+D-1); n=2*(hi-min(NM-1,x+1))
            pre.append(f's_waitcnt lgkmcnt({n})')
        for l in pre: A(l)
        fr=FR+4*(x%NF); acc=v(m['acc'],16)
        A(f'v_mfma_f32_32x32x16_bf16 {acc}, v[{fr}:{fr+3}], {m["bop"]}, {"0" if m["first"] else acc}')
        if x==PH2-1 or x==143 or x==575:
            for l in do_stamp(): A(l)
        used=1 if (x+1)%2==0 else 0
        gap=[]
        y=x+D
        if y<NM:
            if y==PH2:
                for rb in vRB:
                    for r_ in rb: gap.append(f'v_add_u32 v{r_}, v1, v{r_}')
            bb=barrier_before_reads(y,x); gap+=bb; used+=len(bb)
            gap+=reads(y); used+=2
        rt=rate0 if x<144 else rate
        if k<len(ops) and x%rt==rt-1:
            op=ops[k]
            if op[0]=='L' or op[1]<R or op[1]-R<=free_limit:
                e=emit_op(op); k+=1; gap+=e; used+=len(e)
        while ti<len(tasks) and tasks[ti][0]<=x and used+tasks[ti][2]<=valu_budget:
            e=emit_task(tasks[ti]); gap+=e; used+=tasks[ti][2]; ti+=1
        for l in gap: A(l)
    A('s_nop 11')
    while ti<len(tasks):
        for l in emit_task(tasks[ti]): A(l)
        ti+=1
    assert k==len(ops)
    if stamp:
        for l in do_stamp(): A(l)
        A('s_waitcnt vmcnt(0)')
        for l in do_stamp(): A(l)
        A('s_memrealtime s[90:91]\ns_waitcnt lgkmcnt(0)')
        n=nst[0]
        for i in range(n): A(f'v_writelane_b32 v17, s{60+2*i}, {i}')
        A(f'v_writelane_b32 v17, s90, 15\nv_writelane_b32 v17, s92, 14')
        A(f's_lshl_b32 s44, s2, 2\ns_add_u32 s44, s44, s3\ns_lshl_b32 s44, s44, 8\ns_add_u32 s44, s44, {WS_STAMP}\nv_lshlrev_b32 v18, 2, v0')
        A(f'buffer_store_dword v17, v18, s[{sWS}:{sWS+3}], s44 offen')
    A(f'{name}_end:\ns_endpgm')
    return A.text(), kernel_desc(name,256+144,256)

def gen_k5(name='k5_kernel'):
    A=Asm()
    A(f's_cmp_ge_u32 s2, 576\ns_cbranch_scc1 {name}_end')
    A('s_load_dwordx2 s[4:5], s[0:1], 56\ns_load_dwordx2 s[6:7], s[0:1], 72')
    A('s_lshl_b32 s3, s2, 12\nv_lshlrev_b32 v1, 4, v0\nv_add_u32 v1, s3, v1')
    A('s_waitcnt lgkmcnt(0)')
    srd(A,8,6,7,WS_BYTES); srd(A,12,4,5,2359296)
    for f in range(16):
        A(f's_mov_b32 s16, {WS_P+f*2359296}\nbuffer_load_dwordx4 v[{8+4*f}:{11+4*f}], v1, s[8:11], s16 offen')
    A(f's_mov_b32 s16, {WS_H}\nbuffer_load_dwordx4 v[72:75], v1, s[8:11], s16 offen')
    A('s_mul_i32 s17, s2, 7282\ns_lshr_b32 s17, s17, 16')
    A('s_mul_i32 s18, s17, 9\ns_sub_u32 s18, s2, s18')
    A('v_and_b32 v2, 31, v0\nv_lshrrev_b32 v3, 3, v2\ns_lshl_b32 s19, s17, 2\nv_add_u32 v3, s19, v3')
    A('v_and_b32 v2, 7, v2\nv_lshlrev_b32 v2, 5, v2\nv_and_b32 v4, 31, v3\nv_add_u32 v2, v2, v4\nv_lshrrev_b32 v3, 5, v3\nv_lshl_add_u32 v2, v3, 8, v2')
    A('v_mul_u32_u24 v2, 1152, v2\nv_lshrrev_b32 v3, 5, v0\nv_lshl_add_u32 v2, v3, 4, v2\ns_lshl_b32 s18, s18, 7\nv_add_u32 v2, s18, v2')
    A('s_mov_b32 s20, 0xffff0000')
    for f in range(16):
        A(f's_waitcnt vmcnt({16-f})')
        for j in range(4):
            r=8+4*f+j
            if f==0:
                A(f'v_lshlrev_b32 v{80+2*j}, 16, v{r}\nv_and_b32 v{81+2*j}, s20, v{r}')
            else:
                A(f'v_lshlrev_b32 v76, 16, v{r}\nv_and_b32 v77, s20, v{r}\nv_add_f32 v{80+2*j}, v{80+2*j}, v76\nv_add_f32 v{81+2*j}, v{81+2*j}, v77')
    A('s_waitcnt vmcnt(0)')
    for j in range(4):
        A(f'v_cvt_pk_bf16_f32 v{8+j}, v{80+2*j}, v{81+2*j}')
    for j in range(4):
        A(f'v_lshlrev_b32 v76, 16, v{8+j}\nv_and_b32 v77, s20, v{8+j}\nv_lshlrev_b32 v78, 16, v{72+j}\nv_and_b32 v79, s20, v{72+j}')
        A(f'v_add_f32 v76, v76, v78\nv_add_f32 v77, v77, v79\nv_cvt_pk_bf16_f32 v{12+j}, v76, v77')
    A('buffer_store_dwordx4 v[12:15], v2, s[12:15], 0 offen')
    A(f'{name}_end:\ns_endpgm')
    return A.text(), kernel_desc(name,88,88,sgpr=32)

if __name__=='__main__':
    import json
    cfgs=json.loads(sys.argv[1])
    for fn,kw in cfgs.items():
        b4,d4=gen_k4(**kw); b5,d5=gen_k5()
        open(f'dev/{fn}.s','w').write(assemble_file([('k4_kernel',256,256,163840),('k5_kernel',576,256,0)],[('k4_kernel',b4),('k5_kernel',b5)],[d4,d5]))
```

```python
import sys, json; sys.path.insert(0,'dev')
from asmlib import *
from k4 import gen_k4, gen_k5
from k123 import gen_k1, gen_k2, gen_k3
HDR=''.join(l for l in open('sequential_preLN__spectral_gfnet__glu_gated_glu__prompt.s.ref').readlines()[:11])
def build(path, stamp=False, k4kw={}):
    b1,d1,l1=gen_k1(stamp=stamp); b2,d2,l2=gen_k2(stamp=stamp); b3,d3,l3=gen_k3(stamp=stamp)
    b4,d4=gen_k4(stamp=stamp,**k4kw); b5,d5=gen_k5()
    L=[('k1_kernel',512,256,l1),('k2_kernel',289,256,l2),('k3_kernel',256,256,l3),('k4_kernel',256,256,163840),('k5_kernel',576,256,0)]
    open(path,'w').write(assemble_file(L,[('k1_kernel',b1),('k2_kernel',b2),('k3_kernel',b3),('k4_kernel',b4),('k5_kernel',b5)],[d1,d2,d3,d4,d5],header=HDR))
if __name__=='__main__':
    build('full_stamp.s',stamp=True)
    build('full.s')
```

```python
import sys, math, struct; sys.path.insert(0,'dev')
from asmlib import *
from k4 import srd, WS_T, WS_WP, WS_Y, WS_H, WS_L2F, WS_BYTES
from k4c import WS_S, WS_FL, WS_STAMP, SLEN, NE
def fh(x): return '0x%08x'%struct.unpack('<I',struct.pack('<f',x))[0]
WPB=9344
OOB=0x7ff00000
def pr(r): return f'v[{r}:{r+1}]'
def allreduce32(A, r, t):
    for m in ('quad_perm:[1,0,3,2]','quad_perm:[2,3,0,1]','row_half_mirror','row_mirror'):
        A(f's_nop 1\nv_add_f32_dpp v{r}, v{r}, v{r} {m} row_mask:0xf bank_mask:0xf')
    A(f'v_mov_b32 v{t}, v{r}\ns_nop 1\nv_permlane16_swap_b32 v{t}, v{r}\ns_nop 0\nv_add_f32 v{r}, v{r}, v{t}')
def rot_offsets(A, q, o, t):
    A(f'v_lshlrev_b32 v{t}, 1, v{q}\nv_mul_u32_u24 v{t+1}, 57, v{t}\nv_lshrrev_b32 v{t+1}, 9, v{t+1}\nv_mul_u32_u24 v{t+1}, 9, v{t+1}\nv_sub_u32 v{t}, v{t+1}, v{t}')
    A(f'v_lshlrev_b32 v{t}, 7, v{t}')
    for j in range(9):
        A(f'v_add_u32 v{o+j}, {128*j}, v{t}\nv_add_u32 v{t+1}, {128*j+1152}, v{t}\nv_min_u32 v{o+j}, v{o+j}, v{t+1}')
K9=dict(c1=math.cos(2*math.pi/9),c2=math.cos(4*math.pi/9),c4=math.cos(8*math.pi/9),s1=math.sin(2*math.pi/9),s2=math.sin(4*math.pi/9),s4=math.sin(8*math.pi/9),h3=math.sqrt(3)/2,mh=-0.5)
def k9_load(A, sb):
    m={}
    for i,(k,val) in enumerate(K9.items()):
        A(f's_mov_b32 s{sb+i}, {fh(val)}'); m[k]=sb+i
    return m
def sc(sreg, pos, n):
    base=sreg&~1; hi=sreg&1
    sel=[0]*n; selh=[1]*n; sel[pos]=hi; selh[pos]=hi
    return f's[{base}:{base+1}]', sel, selh
def lst(x): return '['+','.join(map(str,x))+']'
def pkfma(A,d,x,sreg,c,neg=False):
    o,sel,selh=sc(sreg,1,3); n='[1,0,0]' if neg else '[0,0,0]'
    A(f'v_pk_fma_f32 {pr(d)}, {pr(x)}, {o}, {pr(c)} op_sel:{lst(sel)} op_sel_hi:{lst(selh)} neg_lo:{n} neg_hi:{n}')
def pkmul(A,d,x,sreg,neg=False):
    o,sel,selh=sc(sreg,1,2); n='[1,0]' if neg else '[0,0]'
    A(f'v_pk_mul_f32 {pr(d)}, {pr(x)}, {o} op_sel:{lst(sel)} op_sel_hi:{lst(selh)} neg_lo:{n} neg_hi:{n}')
def pkadd(A,d,x,y,neg=False):
    n='[0,1]' if neg else '[0,0]'
    A(f'v_pk_add_f32 {pr(d)}, {pr(x)}, {pr(y)} neg_lo:{n} neg_hi:{n}')
def trig(kind,n):
    n%=9
    if kind=='c':
        return ({1:'c1',2:'c2',4:'c4'}[min(n,9-n)],False)
    return ({1:'s1',2:'s2',4:'s4'}[min(n,9-n)], n>4)
def dft9_core(A,K,x0,s,d,R,I,t,negI):
    a_,e_,S_=t
    pkfma(A,a_,s[3],K['mh'],x0)
    pkmul(A,e_,d[3],K['h3'],neg=negI)
    pkadd(A,S_,s[1],s[2]);
    for k in (1,2,4):
        c,_=trig('c',k); pkfma(A,R[k],s[1],K[c],a_)
    pkadd(A,S_,S_,s[4])
    for k in (1,2,4):
        c,ng=trig('s',k)
        o,sel,selh=sc(K[c],1,3); n1=int(ng^negI); n3=int(k==2)
        A(f'v_pk_fma_f32 {pr(I[k])}, {pr(d[1])}, {o}, {pr(e_)} op_sel:{lst(sel)} op_sel_hi:{lst(selh)} neg_lo:[{n1},0,{n3}] neg_hi:[{n1},0,{n3}]')
    pkadd(A,a_,x0,s[3])
    pkadd(A,e_,d[1],d[2],neg=True)
    for b in (2,4):
        for k in (1,2,4):
            c,_=trig('c',b*k); pkfma(A,R[k],s[b],K[c],R[k])
        for k in (1,2,4):
            c,ng=trig('s',b*k); pkfma(A,I[k],d[b],K[c],I[k],neg=ng^negI)
    pkadd(A,e_,e_,d[4])
    pkfma(A,R[3],S_,K['mh'],a_)
    pkadd(A,R[0],a_,S_)
    pkmul(A,I[3],e_,K['h3'],neg=negI)
def layernorm(A,P,D,t,sMASK,sINV,keep_packed=None,unpack=True):
    pkadd(A,t,P[0],P[1]); pkadd(A,t+2,P[2],P[3]); pkadd(A,t+4,P[4],P[5]); pkadd(A,t,t,P[6]); pkadd(A,t+2,t+2,P[7]); pkadd(A,t+4,t+4,P[8])
    pkadd(A,t,t,t+2); pkadd(A,t,t,t+4)
    A(f'v_add_f32 v{t}, v{t}, v{t+1}')
    allreduce32(A,t,t+1)
    A(f'v_mul_f32 v{t}, s{sINV}, v{t}')
    for b in range(9): A(f'v_pk_add_f32 {pr(D[b])}, {pr(P[b])}, {pr(t)} op_sel_hi:[1,0] neg_lo:[0,1] neg_hi:[0,1]')
    A(f'v_pk_mul_f32 {pr(t+2)}, {pr(D[0])}, {pr(D[0])}\nv_pk_mul_f32 {pr(t+4)}, {pr(D[1])}, {pr(D[1])}')
    for b in range(2,9): A(f'v_pk_fma_f32 {pr(t+2+2*(b&1))}, {pr(D[b])}, {pr(D[b])}, {pr(t+2+2*(b&1))}')
    pkadd(A,t+2,t+2,t+4)
    A(f'v_add_f32 v{t+2}, v{t+2}, v{t+3}')
    A(f'v_cvt_pk_bf16_f32 v{t}, v{t}, v{t}\nv_and_b32 v{t}, s{sMASK}, v{t}')
    allreduce32(A,t+2,t+3)
    for b in range(9): A(f'v_pk_add_f32 {pr(D[b])}, {pr(P[b])}, {pr(t)} op_sel_hi:[1,0] neg_lo:[0,1] neg_hi:[0,1]')
    A(f'v_mul_f32 v{t+2}, s{sINV}, v{t+2}\nv_cvt_pk_bf16_f32 v{t+2}, v{t+2}, v{t+2}\nv_and_b32 v{t+2}, s{sMASK}, v{t+2}')
    A(f'v_add_f32 v{t+2}, {fh(1e-5)}, v{t+2}\nv_cvt_pk_bf16_f32 v{t+2}, v{t+2}, v{t+2}\nv_and_b32 v{t+2}, s{sMASK}, v{t+2}')
    A(f'v_sqrt_f32 v{t+2}, v{t+2}')
    for b in range(9): A(f'v_cvt_pk_bf16_f32 v{D[b]}, v{D[b]}, v{D[b]+1}')
    A(f'v_cvt_pk_bf16_f32 v{t+2}, v{t+2}, v{t+2}\nv_and_b32 v{t+2}, s{sMASK}, v{t+2}\nv_rcp_f32 v{t+2}, v{t+2}')
    for b in range(9): A(f'v_and_b32 v{D[b]+1}, s{sMASK}, v{D[b]}\nv_lshlrev_b32 v{D[b]}, 16, v{D[b]}')
    for b in range(9): A(f'v_pk_mul_f32 {pr(D[b])}, {pr(D[b])}, {pr(t+2)} op_sel_hi:[1,0]')
    for b in range(9):
        dst=keep_packed[b] if keep_packed else D[b]
        A(f'v_cvt_pk_bf16_f32 v{dst}, v{D[b]}, v{D[b]+1}')
    if unpack:
        for b in range(9):
            src=keep_packed[b] if keep_packed else D[b]
            A(f'v_lshlrev_b32 v{P[b]}, 16, v{src}\nv_and_b32 v{P[b]+1}, s{sMASK}, v{src}')
def const64(A, lane, sW, C, S, NS, t, sSGN):
    A(f'v_and_b32 v{t}, 15, v{lane}\ns_lshl_b32 s31, s{sW}, 4\nv_add_u32 v{t}, s31, v{t}')
    A(f'v_and_b32 v{t+3}, 1, v{t}\nv_mul_lo_u32 v{t+3}, v{t+3}, s{sSGN}')
    A(f'v_cvt_f32_u32 v{t}, v{t}\nv_mul_f32 v{t}, {fh(1/64)}, v{t}')
    A(f'v_lshrrev_b32 v{t+1}, 4, v{lane}\nv_lshlrev_b32 v{t+1}, 3, v{t+1}\nv_cvt_f32_u32 v{t+1}, v{t+1}\nv_mul_f32 v{t+1}, v{t+1}, v{t}')
    a0=t+4
    for k in range(8): A(f'v_fmamk_f32 v{a0+k}, v{t}, {fh(float(k))}, v{t+1}')
    for k in range(8): A(f'v_fract_f32 v{a0+k}, v{a0+k}')
    for k in range(8): A(f'v_cos_f32 v{a0+8+k}, v{a0+k}')
    for k in range(8): A(f'v_sin_f32 v{a0+k}, v{a0+k}')
    for j in range(4): A(f'v_cvt_pk_bf16_f32 v{C+j}, v{a0+8+2*j}, v{a0+9+2*j}')
    for j in range(4): A(f'v_cvt_pk_bf16_f32 v{S+j}, v{a0+2*j}, v{a0+1+2*j}')
    for j in range(4): A(f'v_xor_b32 v{C+4+j}, v{t+3}, v{C+j}\nv_xor_b32 v{S+4+j}, v{t+3}, v{S+j}')
    for j in range(8): A(f'v_xor_b32 v{NS+j}, s{sSGN}, v{S+j}')
def mfma16(A,d,a_,b_,first): A(f'v_mfma_f32_16x16x32_bf16 {v(d,4)}, {v(a_,4)}, {v(b_,4)}, {"0" if first else v(d,4)}')
def code_prefetch(A,name,vt,vd,sp=40):
    A(f's_getpc_b64 s[{sp}:{sp+1}]\nv_lshlrev_b32 v{vt}, 7, v0\nv_min_u32 v{vt}, {name}_end-{name}-128, v{vt}\nglobal_load_dword v{vd}, v{vt}, s[{sp}:{sp+1}]')
class Stamps:
    def __init__(s,A,on,idx): s.A=A; s.on=on; s.n=0; s.idx=idx
    def __call__(s):
        if s.on: s.A(f's_memtime s[{60+2*s.n}:{61+2*s.n}]'); s.n+=1
    def start(s):
        if s.on: s.A('s_memrealtime s[92:93]'); s()
    def finish(s,sws,sw):
        if not s.on: return
        A=s.A; A('s_waitcnt vmcnt(0)'); s()
        A('s_memrealtime s[90:91]\ns_waitcnt lgkmcnt(0)')
        for i in range(s.n): A(f'v_writelane_b32 v1, s{60+2*i}, {i}')
        A('v_writelane_b32 v1, s90, 15\nv_writelane_b32 v1, s92, 14')
        A(f's_lshl_b32 s44, s2, 2\ns_add_u32 s44, s44, s{sw}\ns_lshl_b32 s44, s44, 8\ns_add_u32 s44, s44, {WS_STAMP+s.idx*0x100000}')
        A(f'v_mbcnt_lo_u32_b32 v2, -1, 0\nv_mbcnt_hi_u32_b32 v2, -1, v2\nv_lshlrev_b32 v2, 2, v2\nbuffer_store_dword v1, v2, s[{sws}:{sws+3}], s44 offen')


def gen_prep(A, name, first, mat):
    A(f's_endpgm\n{name}_pp:')
    A(f's_cmp_ge_u32 s2, {first+144}\ns_cbranch_scc1 {name}_end')
    A(f's_load_dwordx2 s[32:33], s[0:1], {32+8*mat}\ns_load_dwordx2 s[38:39], s[0:1], 72')
    A(f'v_lshrrev_b32 v1, 6, v0\ns_sub_u32 s4, s2, {first}\nv_readfirstlane_b32 s3, v1\nv_and_b32 v2, 63, v0\nv_lshlrev_b32 v3, 4, v2')
    if mat<2:
        for t in range(9):
            A(f'v_add_u32 v4, {64*t}, v2\nv_mul_u32_u24 v5, 58255, v4\nv_lshrrev_b32 v5, 22, v5\nv_mul_u32_u24 v6, {9216-72*16}, v5\nv_lshl_add_u32 v{8+t}, v4, 4, v6')
        A(f's_lshr_b32 s5, s4, 3\ns_and_b32 s6, s4, 7\ns_lshl_b32 s7, s5, 2\ns_add_u32 s7, s7, s3\ns_mul_i32 s7, s7, {8*9216}\ns_mul_i32 s20, s6, 1152\ns_add_u32 s7, s7, s20')
    else:
        A('s_mul_i32 s7, s4, 36864\ns_mul_i32 s20, s3, 9216\ns_add_u32 s7, s7, s20')
    A('s_mul_i32 s21, s3, 9216\ns_waitcnt lgkmcnt(0)')
    srd(A,8,32,33,5308416); srd(A,12,38,39,WS_BYTES)
    for t in range(9):
        if mat<2: A(f's_add_u32 m0, s21, {1024*t}\ns_nop 0\nbuffer_load_dwordx4 v{8+t}, s[8:11], s7 offen lds')
        else: A(f's_add_u32 m0, s21, {1024*t}\ns_add_u32 s20, s7, {1024*t}\nbuffer_load_dwordx4 v3, s[8:11], s20 offen lds')
    if mat==0:
        A(f's_cmp_lg_u32 s4, 0\ns_cbranch_scc1 {name}_pp1\nv_mov_b32 v20, 0\nv_mov_b32 v21, 0\nv_mov_b32 v22, 0\nv_mov_b32 v23, 0\nv_lshlrev_b32 v4, 4, v0')
        for i in range(3): A(f's_mov_b32 s20, {WS_FL+4096*i}\nbuffer_store_dwordx4 v[20:23], v4, s[12:15], s20 offen')
        A(f'{name}_pp1:')
    A('v_lshrrev_b32 v4, 4, v2\nv_bfe_u32 v5, v2, 2, 2\nv_and_b32 v6, 3, v2')
    A(f'v_lshl_add_u32 v4, v4, {3 if mat<2 else 2}, v5\nv_mul_u32_u24 v4, 1152, v4\nv_lshl_add_u32 v4, v6, 3, v4\ns_mul_i32 s20, s3, 288\nv_add_u32 v4, s20, v4')
    if mat<2:
        A(f's_lshr_b32 s20, s3, 1\ns_lshl_b32 s6, s6, 1\ns_add_u32 s6, s6, s20\ns_mul_i32 s6, s6, {SLEN}')
        A(f's_lshr_b32 s20, s5, 1\ns_lshl_b32 s20, s20, 13\ns_add_u32 s6, s6, s20\ns_and_b32 s20, s5, 1\ns_lshl_b32 s20, s20, 10\ns_add_u32 s6, s6, s20\ns_add_u32 s6, s6, {WS_S+mat*4096}')
        A('s_and_b32 s22, s3, 1\ns_mul_i32 s22, s22, 9')
    else:
        A('s_mul_i32 s5, s4, 7282\ns_lshr_b32 s5, s5, 16\ns_mul_i32 s6, s5, 9\ns_sub_u32 s6, s4, s6')
        A('s_and_b32 s20, s5, 3\ns_sub_u32 s20, s20, s3\ns_and_b32 s20, s20, 3')
        for (lo,hi,base,reg) in EPH:
            A(f's_mul_i32 s{reg}, s20, {hi-lo}\ns_add_u32 s{reg}, s{reg}, {base-(hi-lo)-lo}')
        A('s_mov_b32 s22, s24')
        for (lo,hi,base,reg) in EPH[1:]: A(f's_cmp_ge_u32 s6, {lo}\ns_cselect_b32 s22, s{reg}, s22')
        A('s_cmp_eq_u32 s20, 0\ns_cselect_b32 s22, 0, s22\ns_add_u32 s22, s22, s6')
        A(f's_lshr_b32 s23, s22, 1\ns_mul_i32 s23, s23, 18432\ns_and_b32 s22, s22, 1\ns_lshl_b32 s22, s22, 10\ns_add_u32 s23, s23, s22')
        A(f's_and_b32 s5, s5, 12\ns_add_u32 s5, s5, s3\ns_mul_i32 s6, s5, {SLEN}\ns_add_u32 s6, s6, s23\ns_add_u32 s6, s6, {WS_S+648*1024}')
    A('s_waitcnt vmcnt(0)\ns_barrier')
    for t in range(9):
        if t==7: A('s_waitcnt lgkmcnt(8)')
        for q in range(2): A(f'ds_read_b64_tr_b16 v[{24+4*t+2*q}:{25+4*t+2*q}], v4 offset:{32*t+q*(4608 if mat<2 else 18432)}')
    for t in range(9):
        if mat<2: A(f's_add_u32 s20, s22, {t}\ns_lshr_b32 s23, s20, 1\ns_mul_i32 s23, s23, 73728\ns_and_b32 s20, s20, 1\ns_lshl_b32 s20, s20, 11\ns_add_u32 s20, s20, s23\ns_add_u32 s20, s20, s6')
        else: A(f's_add_u32 s20, s6, {2048*t}')
        A(f's_waitcnt lgkmcnt({min(16-2*t,8) if t>=3 else 8})')
        A(f'buffer_store_dwordx4 {v(24+4*t,4)}, v3, s[12:15], s20 offen')
EPH=[(0,NE,9,24),(NE,9,9+3*NE,25)]

def gen_k1(name='k1_kernel', stamp=False, pfw=0):
    A=Asm(); ST=Stamps(A,stamp,1)
    RS=1312
    A(f's_cmp_ge_u32 s2, 512\ns_cbranch_scc1 {name}_pp')
    A('s_load_dwordx4 s[32:35], s[0:1], 0\ns_load_dwordx2 s[36:37], s[0:1], 16\ns_load_dwordx2 s[38:39], s[0:1], 72')
    ST.start()
    code_prefetch(A,name,1,127)
    A('v_lshrrev_b32 v1, 6, v0\ns_nop 0\nv_readfirstlane_b32 s3, v1')
    A(f's_cmp_ge_u32 s2, 256\ns_cbranch_scc1 {name}_wt')
    A('v_and_b32 v0, 63, v0')
    sMASK,sSGN,sINV=24,26,25
    A(f's_mov_b32 s{sMASK}, 0xffff0000\ns_mov_b32 s{sSGN}, 0x80008000\ns_mov_b32 s{sINV}, {fh(1/576)}')
    Q,ROW=2,3; O=4
    A(f'v_and_b32 v{Q}, 31, v0\nv_lshrrev_b32 v{ROW}, 5, v0\ns_lshl_b32 s4, s3, 1\nv_add_u32 v{ROW}, s4, v{ROW}')
    rot_offsets(A,Q,O,14)
    A(f's_lshr_b32 s4, s2, 5\ns_lshl_b32 s4, s4, 8\ns_and_b32 s5, s2, 31\ns_add_u32 s4, s4, s5\ns_mul_i32 s4, s4, 1152')
    A(f'v_mul_u32_u24 v14, {32*1152}, v{ROW}\nv_lshl_add_u32 v14, v{Q}, 2, v14')
    for j in range(9): A(f'v_add_u32 v{O+j}, v14, v{O+j}')
    A('s_waitcnt lgkmcnt(0)')
    srd(A,8,32,33,2359296); srd(A,12,38,39,WS_BYTES)
    X=16
    for j in range(9): A(f'buffer_load_dword v{X+j}, v{O+j}, s[8:11], s4 offen')
    ST()
    C,S,NS=28,36,44
    const64(A,0,3,C,S,NS,56,sSGN)
    K=k9_load(A,48)
    WA,RA=4,5
    A(f'v_mul_u32_u24 v{WA}, {RS}, v{ROW}\nv_lshl_add_u32 v{WA}, v{Q}, 2, v{WA}')
    A(f'v_and_b32 v14, 7, v0\nv_mul_u32_u24 v{RA}, {RS}, v14\nv_lshrrev_b32 v15, 4, v0\nv_lshl_add_u32 v{RA}, v15, 4, v{RA}')
    A(f'v_bfe_u32 v14, v0, 3, 1\nv_lshl_add_u32 v6, v14, 8, v{RA}')
    A(f'v_and_b32 v14, 15, v0\ns_lshl_b32 s5, s3, 4\nv_add_u32 v14, s5, v14')
    A('v_mul_u32_u24 v7, 9, v14\nv_lshrrev_b32 v13, 5, v0\nv_lshl_add_u32 v13, v13, 6, v7')
    A('v_and_b32 v15, 16, v0')
    A(f's_mul_i32 s6, s2, 9216\ns_add_u32 s6, s6, {WS_T}')
    for mu in range(2):
        A(f'v_add_u32 v56, {64*(1+2*mu)}, v13\nv_subrev_u32 v57, 576, v56\nv_min_u32 v56, v56, v57')
        A(f'v_sub_u32 v57, 576, v56\nv_cmp_lt_u32 vcc, v57, v56\nv_min_u32 v56, v56, v57\nv_mov_b32 v57, s{sSGN}')
        A(f'v_cndmask_b32 v{11+mu}, 0, v57, vcc\nv_lshl_add_u32 v{8+mu}, v56, 5, v15')
    A('v_lshl_add_u32 v10, v7, 5, v15')
    A(f'v_mov_b32 v57, {OOB}')
    A('v_cmp_lt_u32 vcc, 31, v14\ns_nop 1\nv_cndmask_b32 v10, v10, v57, vcc')
    A('v_lshl_add_u32 v56, v14, 6, v0\nv_cmp_eq_u32 vcc, 16, v56\ns_nop 1\nv_cndmask_b32 v10, v10, v57, vcc')
    A('v_cmp_lt_u32 vcc, 31, v0\ns_nop 1\nv_cndmask_b32 v10, v10, v57, vcc')
    A('v_cmp_eq_u32 vcc, 0x800, v56\ns_nop 1\nv_cndmask_b32 v10, v10, 16, vcc')
    P=[56+2*b for b in range(9)]; D=[74+2*b for b in range(9)]; T=92
    A('s_waitcnt vmcnt(0)')
    ST()
    for j in range(9): A(f'v_lshlrev_b32 v{P[j]}, 16, v{X+j}\nv_and_b32 v{P[(j+1)%9]+1}, s{sMASK}, v{X+j}')
    layernorm(A,P,D,T,sMASK,sINV)
    s_={b:D[b-1] for b in range(1,5)}; d_={b:D[b+3] for b in range(1,5)}
    for b in range(1,5): pkadd(A,s_[b],P[b],P[9-b]); pkadd(A,d_[b],P[b],P[9-b],neg=True)
    R={k:P[1+k] for k in range(4)}; R[4]=D[8]; I={k:P[4+k] for k in range(1,5)}
    dft9_core(A,K,P[0],s_,d_,R,I,(T,T+2,T+4),True)
    slot={0:R[0]}
    for k in range(1,5): slot[2*k-1]=R[k]; slot[2*k]=I[k]
    for sg in range(9): A(f'v_cvt_pk_bf16_f32 v{X+sg}, v{slot[sg]}, v{slot[sg]+1}')
    for sg in range(9): A(f'ds_write_b32 v{WA}, v{X+sg} offset:{sg*128}')
    A('s_waitcnt lgkmcnt(0)\ns_barrier')
    ST()
    F=56
    for mu in range(2):
        for part in range(2):
            for t in range(2): A(f'ds_read_b128 {v(F+16*mu+8*part+4*t,4)}, v6 offset:{(1+4*mu+part)*128+64*t}')
    for t in range(2): A(f'ds_read_b128 {v(F+32+4*t,4)}, v{RA} offset:{64*t}')
    ACC=96
    for mu in range(2):
        fr,fi=F+16*mu,F+16*mu+8
        A(f's_waitcnt lgkmcnt({6-4*mu})')
        for t in range(2):
            mfma16(A,ACC+8*mu,fr+4*t,C+4*t,t==0); mfma16(A,ACC+8*mu+4,fi+4*t,C+4*t,t==0)
        for t in range(2):
            mfma16(A,ACC+8*mu,fi+4*t,S+4*t,False); mfma16(A,ACC+8*mu+4,fr+4*t,NS+4*t,False)
    A('s_waitcnt lgkmcnt(0)')
    for t in range(2):
        mfma16(A,ACC+16,F+32+4*t,C+4*t,t==0); mfma16(A,ACC+20,F+32+4*t,NS+4*t,t==0)
    for g in range(3):
        o=16+4*g; ac=ACC+8*g
        if g==2: A('s_nop 3')
        for j in range(4): A(f'v_cvt_pk_bf16_f32 v{o+j}, v{ac+2*j}, v{ac+2*j+1}')
        if g<2: A(f'v_xor_b32 v{o+2}, v{11+g}, v{o+2}\nv_xor_b32 v{o+3}, v{11+g}, v{o+3}')
        A(f's_nop 1\nv_permlane16_swap_b32 v{o}, v{o+2}\nv_permlane16_swap_b32 v{o+1}, v{o+3}')
        A(f'buffer_store_dwordx4 {v(o,4)}, v{8+g}, s[12:15], s6 offen')
    ST.finish(12,3)
    A('s_endpgm')
    A(f'{name}_wt:')
    A('s_sub_u32 s4, s2, 256\ns_lshr_b32 s5, s4, 2\ns_and_b32 s6, s4, 3\ns_lshl_b32 s6, s6, 8\ns_add_u32 s5, s5, s6\ns_mul_i32 s5, s5, 578')
    A(f's_mul_i32 s7, s4, {WPB}\ns_add_u32 s7, s7, {WS_WP}')
    A('v_lshlrev_b32 v2, 1, v0\nv_lshlrev_b32 v3, 5, v0')
    A(f'v_add_u32 v4, 512, v2\nv_add_u32 v5, 8192, v3\nv_mov_b32 v6, {OOB}\nv_cmp_lt_u32 vcc, 32, v0\ns_nop 1\nv_cndmask_b32 v4, v4, v6, vcc\nv_cndmask_b32 v5, v5, v6, vcc')
    A('s_waitcnt lgkmcnt(0)')
    srd(A,8,34,35,2048*578); srd(A,16,36,37,2048*578); srd(A,12,38,39,WS_BYTES)
    def wload(va,base):
        for part,sr in ((0,8),(1,16)):
            for e in range(8):
                t,r=e>>2,e&3
                A(f's_add_u32 s20, s5, {(1024*t+64*r)*578}')
                A(f'buffer_load_ushort v{base+8*part+e}, v{va}, s[{sr}:{sr+3}], s20 offen')
    def wpack(base,dst):
        for j in range(8): A(f'v_lshl_or_b32 v{dst+j}, v{base+2*j+1}, 16, v{base+2*j}')
    wload(2,24)
    A(f's_cmp_lg_u32 s3, 0\ns_cbranch_scc1 {name}_wt1')
    wload(4,40)
    A('s_waitcnt vmcnt(0)'); wpack(40,16)
    A('buffer_store_dwordx4 v[16:19], v5, s[12:15], s7 offen\nbuffer_store_dwordx4 v[20:23], v5, s[12:15], s7 offen offset:16')
    A(f'{name}_wt1:')
    A('s_waitcnt vmcnt(0)'); wpack(24,8)
    A('buffer_store_dwordx4 v[8:11], v3, s[12:15], s7 offen\nbuffer_store_dwordx4 v[12:15], v3, s[12:15], s7 offen offset:16')
    gen_prep(A,name,512,0)
    A(f'{name}_end:\ns_endpgm')
    return A.text(), kernel_desc(name,128,128), 36864

def gen_k2(name='k2_kernel', stamp=False):
    A=Asm(); ST=Stamps(A,stamp,2)
    US=160; UB=8192
    A(f's_cmp_ge_u32 s2, 289\ns_cbranch_scc1 {name}_pp')
    A('s_load_dwordx2 s[38:39], s[0:1], 72')
    ST.start()
    code_prefetch(A,name,1,167)
    A('v_lshrrev_b32 v1, 6, v0\ns_nop 0\nv_readfirstlane_b32 s3, v1\nv_and_b32 v0, 63, v0')
    sMASK,sSGN=24,26
    A(f's_mov_b32 s{sMASK}, 0xffff0000\ns_mov_b32 s{sSGN}, 0x80008000')
    A('s_and_b32 s4, s2, 7\ns_mul_i32 s4, s4, 36\ns_lshr_b32 s5, s2, 3\ns_add_u32 s4, s4, s5')
    A('s_cmp_eq_u32 s2, 288\ns_cselect_b32 s4, 288, s4')
    A('s_lshl_b32 s5, s4, 5\ns_cmp_eq_u32 s2, 288\ns_cselect_b32 s5, 16, s5')
    A('s_cmp_lt_u32 s5, 32\ns_cselect_b32 s6, 1, 0')
    A('s_mul_i32 s7, s4, 7282\ns_lshr_b32 s7, s7, 16\ns_mul_i32 s7, s7, 9\ns_sub_u32 s7, s4, s7\ns_cmp_ge_u32 s7, 5\ns_cselect_b32 s27, 0x80008000, 0')
    N,G=2,3
    A(f'v_and_b32 v{N}, 15, v0\nv_lshrrev_b32 v{G}, 4, v0')
    A(f's_and_b32 s20, s3, 1\ns_lshl_b32 s20, s20, 7\ns_lshr_b32 s21, s3, 1\ns_lshl_b32 s21, s21, 4\ns_add_u32 s20, s20, s21')
    A(f'v_lshl_add_u32 v4, v{G}, 5, v{N}\nv_add_u32 v4, s20, v4\nv_mul_u32_u24 v4, 9216, v4')
    A(f's_cmp_eq_u32 s6, 1\ns_cselect_b32 s21, {OOB}, 16\nv_add_u32 v5, s21, v4')
    A(f's_add_u32 s22, s5, {WS_T}')
    A(f's_lshl_b32 s20, s3, 6\nv_lshl_add_u32 v6, v{N}, 2, v{G}\nv_add_u32 v6, s20, v6\nv_mul_u32_u24 v6, {WPB}, v6')
    A(f's_lshl_b32 s23, s4, 5\ns_add_u32 s23, s23, {WS_WP}')
    A('s_waitcnt lgkmcnt(0)')
    srd(A,12,38,39,WS_BYTES)
    A('s_lshl_b32 s20, s3, 11\ns_mov_b32 m0, s20\ns_nop 0\nbuffer_load_dwordx4 v4, s[12:15], s22 offen lds')
    A('s_add_u32 m0, s20, 1024\ns_nop 0\nbuffer_load_dwordx4 v5, s[12:15], s22 offen lds')
    WR,WI=8,12
    A(f'buffer_load_dwordx4 {v(WR,4)}, v6, s[12:15], s23 offen\nbuffer_load_dwordx4 {v(WI,4)}, v6, s[12:15], s23 offen offset:16')
    ST()
    C,S,NS=16,24,32
    const64(A,0,3,C,S,NS,100,sSGN)
    C3,S3,NS3=40,48,56
    t=100
    A(f'v_cvt_f32_u32 v{t}, v{N}\nv_mul_f32 v{t}, {fh(1/32)}, v{t}\nv_lshlrev_b32 v{t+1}, 2, v{G}\nv_cvt_f32_u32 v{t+2}, v{t+1}\nv_mul_f32 v{t+1}, v{t+2}, v{t}')
    a0=t+4
    for k in range(8): A(f'v_fmamk_f32 v{a0+k}, v{t}, {fh(float(16*(k>>2)+(k&3)))}, v{t+1}')
    for k in range(8): A(f'v_fract_f32 v{a0+k}, v{a0+k}')
    for k in range(8): A(f'v_cos_f32 v{a0+8+k}, v{a0+k}')
    for k in range(8): A(f'v_sin_f32 v{a0+k}, v{a0+k}')
    for j in range(4): A(f'v_cvt_pk_bf16_f32 v{C3+j}, v{a0+8+2*j}, v{a0+9+2*j}')
    for j in range(4): A(f'v_cvt_pk_bf16_f32 v{S3+j}, v{a0+2*j}, v{a0+1+2*j}')
    for j in range(4): A(f'v_xor_b32 v{C3+4+j}, 0x80000000, v{C3+j}\nv_xor_b32 v{S3+4+j}, 0x80000000, v{S3+j}')
    for j in range(8): A(f'v_xor_b32 v{NS3+j}, s{sSGN}, v{S3+j}')
    TC,TS,UC,USn=64,72,80,88
    A(f's_lshl_b32 s20, s3, 4\nv_add_u32 v{t}, s20, v{N}\nv_cvt_f32_u32 v{t}, v{t}\nv_mul_f32 v{t}, {fh(1/2048)}, v{t}\nv_mul_f32 v{t+1}, v{t+2}, v{t}')
    for k in range(8): A(f'v_fmamk_f32 v{TS+k}, v{t}, {fh(float(16*(k>>2)+(k&3)))}, v{t+1}')
    for k in range(8): A(f'v_cos_f32 v{TC+k}, v{TS+k}')
    for k in range(8): A(f'v_sin_f32 v{TS+k}, v{TS+k}')
    A(f'v_cvt_f32_u32 v{t+3}, s20\nv_add_f32 v{t+2}, v{t+2}, v{t+3}')
    for nu in range(2):
        A(f'v_add_u32 v{t}, {16*nu}, v{N}\nv_cvt_f32_u32 v{t}, v{t}\nv_mul_f32 v{t}, {fh(1/2048)}, v{t}\nv_mul_f32 v{t+1}, v{t+2}, v{t}')
        for r in range(4): A(f'v_fmamk_f32 v{USn+4*nu+r}, v{t}, {fh(float(r))}, v{t+1}')
    for k in range(8): A(f'v_cos_f32 v{UC+k}, v{USn+k}')
    for k in range(8): A(f'v_sin_f32 v{USn+k}, v{USn+k}')
    A(f's_mov_b32 s28, {fh(1/(2048*288))}')
    for k in range(0,16,2): pkmul(A,UC+k,UC+k,28)
    A(f'v_lshlrev_b32 v4, 4, v0')
    A(f'v_mul_u32_u24 v5, {US}, v{N}\nv_lshl_add_u32 v6, v{G}, 4, v5\nv_lshl_add_u32 v5, v{G}, 3, v5\ns_lshl_b32 s20, s3, 5\nv_add_u32 v5, s20, v5')
    A(f'v_lshrrev_b32 v7, 1, v{G}\nv_lshl_add_u32 v7, v7, 5, v{N}\ns_lshl_b32 s20, s3, 6\nv_add_u32 v7, s20, v7\nv_mul_u32_u24 v7, 9216, v7')
    A(f'v_and_b32 v{t}, 1, v{G}\nv_mul_lo_u32 v{t}, v{t}, s21\nv_add_u32 v7, v7, v{t}')
    A(f's_add_u32 s22, s5, {WS_Y}\ns_add_u32 s23, s22, {16*9216}')
    A('s_waitcnt vmcnt(2)\ns_barrier')
    ST()
    F=100
    for mu in range(2):
        for part in range(2):
            for tt in range(2): A(f'ds_read_b128 {v(F+16*mu+8*part+4*tt,4)}, v4 offset:{(2*mu+tt)*2048+part*1024}')
    AR,AI=132,140
    for mu in range(2):
        fr,fi=F+16*mu,F+16*mu+8
        A(f's_waitcnt lgkmcnt({4-4*mu})')
        for tt in range(2):
            mfma16(A,AR+4*mu,fr+4*tt,C+4*tt,tt==0); mfma16(A,AI+4*mu,fi+4*tt,C+4*tt,tt==0)
        for tt in range(2):
            mfma16(A,AR+4*mu,fi+4*tt,S+4*tt,False); mfma16(A,AI+4*mu,fr+4*tt,NS+4*tt,False)
    X,Y_=148,156
    def cmul(c,s_,conj):
        for k in range(0,8,2):
            A(f'v_pk_mul_f32 {pr(X+k)}, {pr(AR+k)}, {pr(c+k)}\nv_pk_mul_f32 {pr(Y_+k)}, {pr(AI+k)}, {pr(c+k)}')
        n1='[0,0,0]' if conj else '[1,0,0]'; n2='[1,0,0]' if conj else '[0,0,0]'
        for k in range(0,8,2):
            A(f'v_pk_fma_f32 {pr(X+k)}, {pr(AI+k)}, {pr(s_+k)}, {pr(X+k)} neg_lo:{n1} neg_hi:{n1}\nv_pk_fma_f32 {pr(Y_+k)}, {pr(AR+k)}, {pr(s_+k)}, {pr(Y_+k)} neg_lo:{n2} neg_hi:{n2}')
    BR,BI=100,104
    def pack():
        for j in range(4): A(f'v_cvt_pk_bf16_f32 v{BR+j}, v{X+2*j}, v{X+2*j+1}\nv_cvt_pk_bf16_f32 v{BI+j}, v{Y_+2*j}, v{Y_+2*j+1}')
    A('s_nop 7')
    cmul(TC,TS,True); pack()
    A('s_nop 1')
    for nu in range(2):
        mfma16(A,AR+4*nu,C3+4*nu,BR,True); mfma16(A,AI+4*nu,C3+4*nu,BI,True)
    for nu in range(2):
        mfma16(A,AR+4*nu,S3+4*nu,BI,False); mfma16(A,AI+4*nu,NS3+4*nu,BR,False)
    A('s_waitcnt vmcnt(0)')
    for j in range(4):
        A(f'v_lshlrev_b32 v{TC+2*j}, 16, v{WR+j}\nv_and_b32 v{TC+2*j+1}, s{sMASK}, v{WR+j}\nv_lshlrev_b32 v{TS+2*j}, 16, v{WI+j}\nv_and_b32 v{TS+2*j+1}, s{sMASK}, v{WI+j}')
    cmul(TC,TS,False); pack()
    A('s_nop 1')
    for nu in range(2):
        mfma16(A,AR+4*nu,BR,C3+4*nu,True); mfma16(A,AI+4*nu,BI,C3+4*nu,True)
    for nu in range(2):
        mfma16(A,AR+4*nu,BI,NS3+4*nu,False); mfma16(A,AI+4*nu,BR,S3+4*nu,False)
    A('s_nop 7')
    cmul(UC,USn,False); pack()
    for nu in range(2):
        A(f'ds_write_b64 v5, {v(BR+2*nu,2)} offset:{UB+nu*16*US}\nds_write_b64 v5, {v(BI+2*nu,2)} offset:{UB+32*US+nu*16*US}')
    A('s_waitcnt lgkmcnt(0)\ns_barrier')
    ST()
    for nu in range(2):
        for part in range(2):
            for tt in range(2): A(f'ds_read_b128 {v(F+16*nu+8*part+4*tt,4)}, v6 offset:{UB+part*32*US+nu*16*US+64*tt}')
    for nu in range(2):
        fr,fi=F+16*nu,F+16*nu+8
        A(f's_waitcnt lgkmcnt({4-4*nu})')
        for tt in range(2):
            mfma16(A,AR+4*nu,C+4*tt,fr+4*tt,tt==0); mfma16(A,AI+4*nu,C+4*tt,fi+4*tt,tt==0)
        for tt in range(2):
            mfma16(A,AR+4*nu,NS+4*tt,fi+4*tt,False); mfma16(A,AI+4*nu,S+4*tt,fr+4*tt,False)
    for nu in range(2):
        o=X+4*nu
        if nu==1: A('s_nop 1')
        A(f'v_cvt_pk_bf16_f32 v{o}, v{AR+4*nu}, v{AR+4*nu+1}\nv_cvt_pk_bf16_f32 v{o+1}, v{AR+4*nu+2}, v{AR+4*nu+3}')
        A(f'v_cvt_pk_bf16_f32 v{o+2}, v{AI+4*nu}, v{AI+4*nu+1}\nv_cvt_pk_bf16_f32 v{o+3}, v{AI+4*nu+2}, v{AI+4*nu+3}')
        A(f'v_xor_b32 v{o+2}, s27, v{o+2}\nv_xor_b32 v{o+3}, s27, v{o+3}')
        A(f's_nop 1\nv_permlane16_swap_b32 v{o}, v{o+2}\nv_permlane16_swap_b32 v{o+1}, v{o+3}')
        A(f'buffer_store_dwordx4 {v(o,4)}, v7, s[12:15], s{22+nu} offen')
    ST.finish(12,3)
    gen_prep(A,name,289,1)
    A(f'{name}_end:\ns_endpgm')
    return A.text(), kernel_desc(name,168,168), 36864

def gen_k3(name='k3_kernel', stamp=False, layout='B16'):
    A=Asm(); ST=Stamps(A,stamp,3)
    RS=2304+16; TB=9216; IB=TB+8*RS
    A(f's_cmp_ge_u32 s2, 256\ns_cbranch_scc1 {name}_pp')
    A('s_load_dwordx2 s[32:33], s[0:1], 0\ns_load_dwordx2 s[38:39], s[0:1], 72')
    ST.start()
    code_prefetch(A,name,1,159)
    A('v_lshrrev_b32 v1, 6, v0\nv_lshlrev_b32 v158, 4, v0\nv_readfirstlane_b32 s3, v1\nv_and_b32 v0, 63, v0')
    sMASK,sSGN,sINV=24,26,25
    A(f's_mov_b32 s{sMASK}, 0xffff0000\ns_mov_b32 s{sSGN}, 0x80008000\ns_mov_b32 s{sINV}, {fh(1/576)}')
    TID16=158
    A(f's_mul_i32 s6, s2, 9216\ns_add_u32 s6, s6, {WS_Y}\ns_lshl_b32 s20, s3, 10')
    A('s_waitcnt lgkmcnt(0)')
    srd(A,8,32,33,2359296); srd(A,12,38,39,WS_BYTES)
    A(f's_mov_b32 m0, s20\ns_add_u32 s7, s6, 4096\nbuffer_load_dwordx4 v{TID16}, s[12:15], s6 offen lds')
    A(f's_add_u32 m0, s20, 4096\ns_nop 0\nbuffer_load_dwordx4 v{TID16}, s[12:15], s7 offen lds')
    A(f's_cmp_lg_u32 s3, 0\ns_cbranch_scc1 {name}_l1\ns_mov_b32 m0, 8192\ns_add_u32 s7, s6, 8192\nbuffer_load_dwordx4 v{TID16}, s[12:15], s7 offen lds\n{name}_l1:')
    Q,ROW=2,3; O=4
    A(f'v_and_b32 v{Q}, 31, v0\nv_lshrrev_b32 v{ROW}, 5, v0\ns_lshl_b32 s4, s3, 1\nv_add_u32 v{ROW}, s4, v{ROW}')
    rot_offsets(A,Q,O,14)
    A(f's_lshr_b32 s4, s2, 5\ns_lshl_b32 s4, s4, 8\ns_and_b32 s5, s2, 31\ns_add_u32 s4, s4, s5\ns_mul_i32 s4, s4, 1152')
    A(f'v_mul_u32_u24 v14, {32*1152}, v{ROW}\nv_lshl_add_u32 v14, v{Q}, 2, v14')
    X=16
    for j in range(9): A(f'v_add_u32 v15, v14, v{O+j}\nbuffer_load_dword v{X+j}, v15, s[8:11], s4 offen')
    ST()
    A(f'v_lshrrev_b32 v14, 2, v{Q}\nv_xor_b32 v15, v14, v{ROW}\nv_lshlrev_b32 v15, 4, v15\nv_lshl_add_u32 v15, v14, 7, v15\nv_and_b32 v14, 3, v{Q}\nv_lshl_add_u32 v15, v14, 2, v15\nv_add_u32 v15, {IB}, v15')
    for j in range(9): A(f'v_lshl_add_u32 v{O+j}, v{O+j}, 3, v15')
    C,S,NS=28,36,44
    const64(A,0,3,C,S,NS,100,sSGN)
    K=k9_load(A,48)
    C0,NS0=52,56
    for j in range(1,4): A(f'v_mov_b32 v{C0+j}, v{C+j}\nv_mov_b32 v{NS0+j}, v{NS+j}')
    A(f'v_and_b32 v14, s{sMASK}, v{C}\nv_or_b32 v14, 0x3f00, v14\nv_and_b32 v15, s{sMASK}, v{NS}\nv_and_b32 v13, 1, v0\nv_lshl_or_b32 v15, v13, 15, v15\nv_or_b32 v15, 0x3f00, v15')
    A(f'v_cmp_gt_u32 vcc, 16, v0\ns_nop 1\nv_cndmask_b32 v{C0}, v{C}, v14, vcc\nv_cndmask_b32 v{NS0}, v{NS}, v15, vcc')
    RA=60
    A('v_lshrrev_b32 v13, 4, v0\nv_bfe_u32 v14, v0, 2, 2\nv_lshl_add_u32 v13, v13, 3, v14\nv_mul_u32_u24 v13, 9, v13')
    A('v_and_b32 v14, 1, v0\nv_lshlrev_b32 v14, 3, v14')
    for q in range(2): A(f'v_add_u32 v15, {36*q}, v13\nv_lshl_add_u32 v{RA+8+q}, v15, 5, v14')
    A('v_bfe_u32 v15, v0, 1, 1\nv_lshl_add_u32 v13, v15, 6, v13')
    for mu in range(2):
        for t in range(2):
            for q in range(2):
                r=RA+4*mu+2*t+q
                A(f'v_add_u32 v{r}, {9*(32*t+4*q)+64*(1+2*mu)}, v13\nv_subrev_u32 v15, 576, v{r}\nv_min_u32 v{r}, v{r}, v15\nv_sub_u32 v15, 576, v{r}\nv_min_u32 v{r}, v{r}, v15\nv_lshl_add_u32 v{r}, v{r}, 5, v14')
    A(f'v_and_b32 v13, 7, v0\nv_mul_u32_u24 v72, {RS}, v13\nv_lshrrev_b32 v13, 4, v0\nv_lshl_add_u32 v72, v13, 4, v72\ns_lshl_b32 s21, s3, 6\ns_add_u32 s21, s21, {TB}\nv_add_u32 v72, s21, v72')
    A('v_bfe_u32 v13, v0, 3, 1\nv_lshl_add_u32 v70, v13, 9, v72')
    A(f'v_mul_u32_u24 v71, {RS}, v{ROW}\nv_lshl_add_u32 v71, v{Q}, 3, v71\nv_add_u32 v71, {TB}, v71')
    A(f'v_lshrrev_b32 v13, 7, v{TID16}\nv_bfe_u32 v14, v{TID16}, 4, 3\nv_and_b32 v15, 7, v13\nv_xor_b32 v14, v14, v15\nv_lshlrev_b32 v14, 4, v14')
    if layout=='A32':
        A('v_lshl_add_u32 v73, v13, 9, v14'); RND=32*512
        A('s_lshr_b32 s21, s2, 2\ns_mul_i32 s21, s21, 36864\ns_and_b32 s22, s2, 3\ns_lshl_b32 s22, s22, 7\ns_add_u32 s21, s21, s22')
    else:
        A('v_lshrrev_b32 v15, 2, v13\nv_lshl_add_u32 v14, v15, 11, v14\nv_and_b32 v15, 3, v13\nv_lshl_add_u32 v73, v15, 8, v14'); RND=8*2048
        A('s_lshr_b32 s21, s2, 2\ns_mul_i32 s21, s21, 36864\ns_bfe_u32 s22, s2, 0x10001\ns_lshl_b32 s22, s22, 10\ns_add_u32 s21, s21, s22\ns_and_b32 s22, s2, 1\ns_lshl_b32 s22, s22, 7\ns_add_u32 s21, s21, s22')
    A('s_waitcnt vmcnt(9)\ns_barrier')
    ST()
    F=100
    for mu in range(2):
        for part in range(2):
            for t in range(2):
                for q in range(2): A(f'ds_read_b64_tr_b16 {v(F+16*mu+8*part+4*t+2*q,2)}, v{RA+4*mu+2*t+q} offset:{16*part}')
        if mu==0: A('s_waitcnt lgkmcnt(3)')
    for part in range(2):
        for q in range(2): A(f'ds_read_b64_tr_b16 {v(F+32+4*part+2*q,2)}, v{RA+8+q} offset:{16*part}')
    ACC=76
    for mu in range(2):
        fr,fi=F+16*mu,F+16*mu+8
        A(f's_waitcnt lgkmcnt({12-8*mu})')
        for t in range(2):
            mfma16(A,ACC+8*mu,C+4*t,fr+4*t,t==0); mfma16(A,ACC+8*mu+4,C+4*t,fi+4*t,t==0)
        for t in range(2):
            mfma16(A,ACC+8*mu,NS+4*t,fi+4*t,False); mfma16(A,ACC+8*mu+4,S+4*t,fr+4*t,False)
    A('s_waitcnt lgkmcnt(0)')
    mfma16(A,ACC+16,C0,F+32,True); mfma16(A,ACC+16,NS0,F+36,False)
    for mu in range(2):
        if mu==1: A('s_nop 4')
        for part in range(2): A(f'ds_write_b128 v70, {v(ACC+8*mu+4*part,4)} offset:{(1+4*mu+part)*256}')
    A(f's_nop 4\nds_write_b128 v72, {v(ACC+16,4)}')
    A('s_waitcnt lgkmcnt(0)\ns_barrier')
    ST()
    TT=[100+2*sg for sg in range(9)]
    for sg in range(9): A(f'ds_read_b64 {pr(TT[sg])}, v71 offset:{sg*256}')
    U={b:118+2*b for b in range(5)}; V={b:126+2*b for b in range(1,5)}; T=136
    A('s_waitcnt lgkmcnt(0)')
    dft9_core(A,K,TT[0],{k:TT[2*k-1] for k in range(1,5)},{k:TT[2*k] for k in range(1,5)},U,V,(T,T+2,T+4),False)
    Yb={0:U[0]}
    for b in range(1,5):
        Yb[b]=TT[b]; Yb[9-b]=TT[9-b]
        pkadd(A,Yb[b],U[b],V[b],neg=True); pkadd(A,Yb[9-b],U[b],V[b])
    P=[28+2*b for b in range(9)]; D=[76+2*b for b in range(9)]
    for j in range(9): A(f'v_cvt_pk_bf16_f32 v{D[j]}, v{Yb[j]}, v{Yb[(j+1)%9]+1}')
    A('s_waitcnt vmcnt(0)')
    for j in range(9):
        A(f'v_and_b32 v{D[j]+1}, s{sMASK}, v{D[j]}\nv_lshlrev_b32 v{D[j]}, 16, v{D[j]}\nv_lshlrev_b32 v{P[j]}, 16, v{X+j}\nv_and_b32 v{P[j]+1}, s{sMASK}, v{X+j}')
    for j in range(9): pkadd(A,P[j],P[j],D[j])
    for j in range(9): A(f'v_cvt_pk_bf16_f32 v{X+j}, v{P[j]}, v{P[j]+1}')
    for j in range(9): A(f'ds_write_b32 v{O+j}, v{X+j}')
    for j in range(9): A(f'v_lshlrev_b32 v{P[j]}, 16, v{X+j}\nv_and_b32 v{P[j]+1}, s{sMASK}, v{X+j}')
    L=[100+j for j in range(9)]
    layernorm(A,P,D,T,sMASK,sINV,keep_packed=L,unpack=False)
    for j in range(9): A(f'ds_write_b32 v{O+j}, v{L[j]} offset:9216')
    A('s_waitcnt lgkmcnt(0)\ns_barrier')
    ST()
    for im in range(2):
        for rd in range(2): A(f'ds_read_b128 {v(28+8*im+4*rd,4)}, v{TID16} offset:{IB+im*9216+rd*4096}')
    A(f's_cmp_lg_u32 s3, 0\ns_cbranch_scc1 {name}_l2')
    for im in range(2): A(f'ds_read_b128 {v(44+4*im,4)}, v{TID16} offset:{IB+im*9216+8192}')
    A('s_waitcnt lgkmcnt(0)')
    for im,base in ((1,WS_L2F),(0,WS_H)):
        A(f's_add_u32 s22, s21, {base+2*RND}\nbuffer_store_dwordx4 {v(44+4*im,4)}, v73, s[12:15], s22 offen')
    A(f'{name}_l2:\ns_waitcnt lgkmcnt(0)')
    for im,base in ((1,WS_L2F),(0,WS_H)):
        for rd in range(2): A(f's_add_u32 s22, s21, {base+rd*RND}\nbuffer_store_dwordx4 {v(28+8*im+4*rd,4)}, v73, s[12:15], s22 offen')
    ST.finish(12,3)
    gen_prep(A,name,256,2)
    A(f'{name}_end:\ns_endpgm')
    return A.text(), kernel_desc(name,160,160), IB+2*9216
```

```python
import sys; sys.path.insert(0,'dev')
from asmlib import *
from k4 import srd, WS_H, WS_L2F, WS_BYTES, WS_STAMP
WS_P=0x1400000
WS_HH=0x2000000
WS_S=0x3200000
WS_FL=0x4200000
WS_STAMP=0x4400000
SLEN=244*4096
NE=7
def eorder(delta):
    o=[(delta,t) for t in range(9)]
    for rho in range(3): o+=[((delta+1+rho)%4,t) for t in range(NE)]
    for rho in range(3): o+=[((delta+1+rho)%4,t) for t in range(NE,9)]
    return o

def gen_k4c(name='k4_kernel', B=2, B0=1, P0=5, stamp=False, dma=True, dovalu=True, nobar=False, R=10, fl0=(2,40), fl1=(330,370), hh_mod='sc1', p_mod='', noflag=False, pubdelay=72, hlead=160, hurg=80, boost=0, hl_mod='sc1', xmap=0, dpause=(0,0), hrate=0):
    A=Asm()
    vRD=[2,3,4]; vS,vL2,vP,vHS,vFL=5,6,7,8,9
    vHL=[10,11,12]; vF=16; vT=20
    FR=24; NF=12; ACC=[72,104]; OA=[216,224,232,240,248,104,112,120,128]; HH=144; PK=72; PF=136
    sWS=8; sW4K,sTMP,sNL2E,sSO=28,29,30,31
    A(f's_cmp_ge_u32 s2, 256\ns_cbranch_scc1 {name}_end')
    A('s_load_dwordx2 s[38:39], s[0:1], 72')
    nst=[0]
    def do_stamp():
        if stamp:
            i=nst[0]; nst[0]+=1
            return [f's_memtime s[{58+2*i}:{59+2*i}]']
        return []
    for l in do_stamp(): A(l)
    if stamp: A('s_memrealtime s[92:93]')
    vm=[]
    A('v_lshrrev_b32 v1, 6, v0\nv_lshlrev_b32 v21, 7, v0\nv_readfirstlane_b32 s3, v1\nv_and_b32 v0, 63, v0')
    if xmap==0:
        A('s_bfe_u32 s4, s2, 0x20001\ns_bfe_u32 s5, s2, 0x20003\ns_and_b32 s6, s2, 1\ns_lshl_b32 s6, s6, 3\ns_lshr_b32 s7, s2, 5\ns_add_u32 s6, s6, s7')
    elif xmap==1:
        A('s_bfe_u32 s4, s2, 0x10002\ns_lshl_b32 s4, s4, 1\ns_bfe_u32 s7, s2, 0x10005\ns_add_u32 s4, s4, s7\ns_bfe_u32 s5, s2, 0x20003\ns_and_b32 s6, s2, 3\ns_lshl_b32 s6, s6, 2\ns_lshr_b32 s7, s2, 6\ns_add_u32 s6, s6, s7')
    else:
        A('s_bfe_u32 s4, s2, 0x20005\ns_bfe_u32 s5, s2, 0x20003\ns_and_b32 s6, s2, 7\ns_lshl_b32 s6, s6, 1\ns_lshr_b32 s7, s2, 7\ns_add_u32 s6, s6, s7')
    A('s_lshl_b32 s7, s4, 2\ns_add_u32 s7, s7, s5')
    A(f's_lshl_b32 s{sW4K}, s3, 12\nv_lshlrev_b32 v{vRD[0]}, 4, v0')
    A(f's_mul_i32 s44, s7, {SLEN}\ns_add_u32 s44, s44, s{sW4K}\ns_add_u32 s44, s44, {WS_S}\nv_add_u32 v{vS}, s44, v{vRD[0]}')
    A(f's_lshl_b32 s45, s6, 2\ns_add_u32 s45, s45, s3\ns_mul_i32 s45, s45, 36864\ns_add_u32 s44, s45, {WS_L2F}\nv_add_u32 v{vL2}, s44, v{vRD[0]}')
    A('s_getpc_b64 s[40:41]\ns_waitcnt lgkmcnt(0)')
    srd(A,sWS,38,39,WS_BYTES)
    mf=[]
    def quad(f0,acc,first,bops,need=None):
        for rt in range(2):
            for h in range(2):
                mf.append(dict(f=f0+h,acc=acc+4*rt,first=(first and h==0),bop=bops(h,rt),need=need))
    f=0
    for b in range(9):
        for i in range(9):
            for mat in range(2):
                for ph in range(2):
                    quad(f,ACC[b&1]+16*mat+8*ph,i==0,lambda h,rt,i=i:a(8*(2*i+h)+4*rt,4),need=(('L',2*i+1) if b==0 else None)); f+=2
    PH2=len(mf)
    def hop(e,rt): return v(HH+8*e+4*rt,4) if e<9 else a(8*(e-9)+4*rt,4)
    for i in range(18):
        for nu in range(9):
            quad(f,OA[nu],i==0,lambda h,rt,i=i:hop(2*i+h,rt),need=('E',2*i+1)); f+=2
    NM=len(mf); NFR=f; NU=NFR//4; NS=(NU+3)//4
    assert NM==1944 and NU==243
    ops=[]
    for S in range(NS):
        for q in range(4):
            ops.append(('D',S,q))
            if S<5:
                for z in range(2):
                    n=8*S+2*q+z
                    if n<36: ops.append(('L',n>>1,n&1))
    def op_allowed(op): return op[0]!='D' or op[1]<R or op[1]-R<=free[0]
    def op_items(op):
        if op[0]=='D':
            S,q=op[1:]; pre=[]
            if q==0: pre=[f's_add_u32 m0, s{sW4K}, {(S%R)*16384}', f's_mov_b32 s{sSO}, {S*16384}']
            return pre,f'buffer_load_dwordx4 v{vS}, s[{sWS}:{sWS+3}], s{sSO} offen offset:{q*1024} lds'
        if op[0]=='L':
            k_,rt=op[1:]; n=2*k_+rt
            return ([f's_mov_b32 s{sTMP}, {(n>>2)*4096}'] if n%4==0 else []), f'buffer_load_dwordx4 {a(8*k_+4*rt,4)}, v{vL2}, s[{sWS}:{sWS+3}], s{sTMP} offen offset:{(n&3)*1024}'
    free=[-1]; k=[0]
    def skip(op): return (not dma) and op[0]=='D'
    while ops[k[0]][0]!='D' or ops[k[0]][1]<P0:
        op=ops[k[0]]; k[0]+=1
        if skip(op): continue
        pre,ins=op_items(op)
        for l in pre+[ins]: A(l)
        vm.append(op)
        if k[0]==6:
            A(f'v_min_u32 v22, {name}_end-{name}-256, v21\nglobal_load_dword v{PF}, v22, s[40:41]\nv_add_u32 v21, 0x8000, v21\nv_min_u32 v22, {name}_end-{name}-256, v21\nglobal_load_dword v{PF+1}, v22, s[40:41]'); vm+=[('pf',),('pf',)]
    A(f's_mov_b32 s{sNL2E}, 0xbfb8aa3b')
    A(f'v_add_u32 v{vRD[1]}, 0x10000, v{vRD[0]}\nv_add_u32 v{vRD[2]}, 0x20000, v{vRD[0]}')
    A(f's_mul_i32 s44, s4, 2359296\ns_add_u32 s44, s44, s45\ns_mul_i32 s46, s5, 9216\ns_add_u32 s44, s44, s46\ns_add_u32 s44, s44, {WS_P}\nv_add_u32 v{vP}, s44, v{vRD[0]}')
    A(f's_lshl_b32 s44, s6, 4\ns_lshl_b32 s46, s4, 2\ns_add_u32 s44, s44, s46\ns_lshl_b32 s44, s44, 2\ns_add_u32 s44, s44, s3\ns_mul_i32 s44, s44, 18432\ns_add_u32 s44, s44, {WS_HH}')
    A(f's_mul_i32 s46, s5, 73728\ns_add_u32 s46, s46, s44\nv_add_u32 v{vHS}, s46, v{vRD[0]}')
    for rho in range(3): A(f's_add_u32 s46, s5, {1+rho}\ns_and_b32 s46, s46, 3\ns_mul_i32 s46, s46, 73728\ns_add_u32 s46, s46, s44\nv_add_u32 v{vHL[rho]}, s46, v{vRD[0]}')
    A(f's_lshl_b32 s44, s6, 2\ns_add_u32 s44, s44, s4\ns_lshl_b32 s44, s44, 2\ns_add_u32 s44, s44, s3\ns_lshl_b32 s44, s44, 4\ns_add_u32 s44, s44, {WS_FL}\nv_mov_b32 v{vFL}, s44\ns_lshl_b32 s47, s5, 2\nv_mov_b32 v13, 1')
    lg=[]; done=[-1]
    def lgwait(pred):
        last=max([i for i,t in enumerate(lg) if pred(t)],default=-1)
        if last<=done[0]: return []
        n=len(lg)-1-last; assert n<=15; done[0]=last
        return [f's_waitcnt lgkmcnt({n})']
    vdone=[-1]
    def vmwait(pred):
        last=max([i for i,t in enumerate(vm) if pred(t)],default=-1)
        if last<=vdone[0]: return []
        n=len(vm)-1-last; vdone[0]=last
        return [] if n>=63 else [f's_waitcnt vmcnt({n})']
    gs=[]; S=0
    while S<NS:
        gs.append(S); S+=(B0 if S<5 else B)
    gend={g:(gs[i+1] if i+1<len(gs) else NS) for i,g in enumerate(gs)}
    def sync_for(fi):
        if fi%16 or (fi//16) not in gend: return []
        g=fi//16; out=[]
        while k[0]<len(ops) and any(o[0]=='D' and o[1]<gend[g] for o in ops[k[0]:]):
            op=ops[k[0]]; assert op_allowed(op); k[0]+=1
            if skip(op): continue
            pre,ins=op_items(op); out+=pre_pending(op,pre)+[ins]; vm.append(op)
        out+=vmwait(lambda t:t[0]=='D' and t[1]<gend[g])
        if not nobar: out.append('s_barrier')
        free[0]=(done[0]+1)//16-1
        return out
    pre_done={}
    def pre_pending(op,pre):
        n=pre_done.get(op,0)
        out=pre[n:]
        if out and out[-1].startswith('s_add_u32 m0'): out=out+['s_nop 0']
        return out
    def read(fi):
        S=fi//16; off=(S%R)*16384+(fi%16)*1024; r=FR+4*(fi%NF); lg.append(('F',fi))
        return f'ds_read_b128 v[{r}:{r+3}], v{vRD[off>>16]} offset:{off&0xffff}'
    HAZ=4
    chains=[]
    def add_chain(ops_,ready,dl,deps=(),tag=None):
        c=dict(ops=list(ops_),ready=ready,dl=dl,deps=list(deps),tag=tag,i=0); chains.append(c); return c
    for b in range(9):
        last=144*b+143; acc=ACC[b&1]; dl=(144*(b+2) if b<7 else (PH2+20 if b==7 else PH2+4*36))
        for rt in range(2):
            cv=[]
            for ph in range(2):
                g=acc+8*ph+4*rt; vals=[]
                for i in range(4):
                    r=g+i
                    o=[(f'v_mul_f32 v{r}, s{sNL2E}, v{r}',1),(f'v_exp_f32 v{r}, v{r}',2),(f'v_add_f32 v{r}, 1.0, v{r}',1),(f'v_rcp_f32 v{r}, v{r}',2),(f'v_mul_f32 v{r}, v{r}, v{r+16}',1)] if dovalu else []
                    vals.append(add_chain(o,last+HAZ,dl))
                for j in range(2):
                    cv.append(add_chain([(f'v_cvt_pk_bf16_f32 v{HH+8*b+4*rt+2*ph+j}, v{g+2*j}, v{g+2*j+1}',1)],last+HAZ,dl,deps=vals[2*j:2*j+2],tag=('hh',b)))
            add_chain([(f's_mov_b32 s{sTMP}, {b*2048}',1),(('V',('HS',b),f'buffer_store_dwordx4 {v(HH+8*b+4*rt,4)}, v{vHS}, s[{sWS}:{sWS+3}], s{sTMP} offen offset:{rt*1024} {hh_mod}'),2)],last+HAZ,dl+40,deps=cv,tag=('hs',b))
    lastq=PH2+17*36
    for item in range(9):
        pk=PK+4*(item%3); cv=[]
        srcs=[(OA[2*(item>>1)+z]+4*(item&1)) for z in range(2)] if item<8 else [OA[8],OA[8]+4]
        rdy=lastq+4*(2*(item>>1)+1 if item<8 else 8)+3+HAZ
        prev=[c for c in chains if c['tag']==('ps',item-3)]
        for z in range(2):
            for j in range(2): cv.append(add_chain([(f'v_cvt_pk_bf16_f32 v{pk+2*z+j}, v{srcs[z]+2*j}, v{srcs[z]+2*j+1}',1)],rdy,10**9,deps=prev))
        add_chain([(f's_mov_b32 s{sTMP}, {(item>>2)*4096}',1),(('V',('PS',item),f'buffer_store_dwordx4 {v(pk,4)}, v{vP}, s[{sWS}:{sWS+3}], s{sTMP} offen offset:{(item&3)*1024} {p_mod}'),2)],rdy,10**9,deps=cv,tag=('ps',item))
    hl=[]
    for e in range(9,36):
        for rt in range(2):
            if e<9+3*NE: rho,tau,ph=(e-9)//NE,(e-9)%NE,0
            else: rho,tau,ph=(e-9-3*NE)//(9-NE),NE+(e-9-3*NE)%(9-NE),1
            hl.append((e,rt,rho,tau,ph))
    hi=[0]; checked=[False,False]; published=[False,False]
    stmp_busy=[None]; stx={}; lasth=[0]
    def try_chain(x,cost,force=False):
        for c in chains:
            if c['i']>=len(c['ops']): continue
            if c['ready']>x and not force: continue
            if any(d['i']<len(d['ops']) or (d['ready']>x and not force) for d in c['deps']): continue
            t,cs=c['ops'][c['i']]
            if cs!=cost and not force: continue
            if isinstance(t,str) and t.startswith(f's_mov_b32 s{sTMP}'):
                if stmp_busy[0] is not None: continue
                stmp_busy[0]=c
            c['i']+=1; c['ready']=x+(2 if cs==2 else 1)
            if isinstance(t,tuple):
                vm.append(t[1]); stmp_busy[0]=None; return t[2]
            return t
        return None
    def pending(pred): return any(pred(c) and c['i']<len(c['ops']) for c in chains)
    def flag_store(ph):
        vm.append(('FS',ph)); published[ph]=True
        return f'buffer_store_dword v13, v{vFL}, s[{sWS}:{sWS+3}], s47 offen offset:{ph*4095 if False else 0} sc1' if ph==0 else f'buffer_store_dword v13, v14, s[{sWS}:{sWS+3}], s47 offen sc1'
    A(f'v_add_u32 v14, 4096, v{vFL}')
    def flag_load(ph):
        vm.append(('FL',ph))
        return f'buffer_load_dwordx4 {v(vF,4)}, v{vFL if ph==0 else 14}, s[{sWS}:{sWS+3}], 0 offen sc1'
    def flag_check(ph):
        checked[ph]=True
        if noflag: return []
        L=f'{name}_f{ph}'
        return vmwait(lambda t:t==('FL',ph))+[f'{L}a:',f'v_and_b32 v{vT}, v{vF}, v{vF+1}',f'v_and_b32 v{vT+1}, v{vF+2}, v{vF+3}',f'v_and_b32 v{vT}, v{vT}, v{vT+1}',f'v_cmp_ne_u32 vcc, 0, v{vT}',f's_cbranch_vccnz {L}b',
                f'buffer_load_dwordx4 {v(vF,4)}, v{vFL if ph==0 else 14}, s[{sWS}:{sWS+3}], 0 offen sc1','s_waitcnt vmcnt(0)',f's_branch {L}a',f'{L}b:']
    for l in do_stamp(): A(l)
    rd=[0]
    for fi in range(8):
        for l in sync_for(fi)+[read(fi)]: A(l)
    rd[0]=8
    for l in do_stamp(): A(l)
    nforced=[0]
    def nready(x,cost): return sum(1 for c in chains if c['i']<len(c['ops']) and c['ready']<=x and c['ops'][c['i']][1]==cost and not any(d['i']<len(d['ops']) or d['ready']>x for d in c['deps']))
    for x in range(NM):
        m=mf[x]; pre=[]
        while pending(lambda c:c['dl']<=x+1):
            t=try_chain(x,1,force=True); assert t; pre.append('s_nop 0'); pre.append(t); nforced[0]+=1
        if m['need'] and x%4==0:
            nk,ni=m['need']
            if nk=='L': pre+=vmwait(lambda t:t[0]=='L' and t[1]<=ni)
            elif ni>=9:
                assert any(t==('HL',ni,1) for t in vm),(x,ni)
                pre+=vmwait(lambda t:t[0]=='HL' and t[1]<=ni)
            if nk=='E': assert not pending(lambda c:c['tag'] in (('hh',ni),('hh',ni-1))),(x,ni)
        if x%8==0: pre+=lgwait(lambda t:t[1]<(x//8+1)*4)
        for l in pre: A(l)
        r=FR+4*(m['f']%NF); acc=v(m['acc'],4)
        A(f'v_mfma_f32_16x16x32_bf16 {acc}, v[{r}:{r+3}], {m["bop"]}, {"0" if m["first"] else acc}')
        if x in (143,PH2-1,PH2+71,PH2+143,PH2+215,PH2+287,PH2+359,PH2+431,PH2+503,PH2+575):
            for l in do_stamp(): A(l)
        gap=[]; g8=x%8; slots=2
        if g8==7: slots-=1
        tb=(x<144 or x>=PH2)
        for _ in range((2 if g8%4==0 else 0) if tb else (1 if g8%2==0 else 0)):
            if rd[0]<NFR:
                e=sync_for(rd[0]); gap+=e+[read(rd[0])]; rd[0]+=1; slots-=1+len(e)
        big=None
        if slots==2:
            want_dma=(g8==3) or (x<144 and g8 in (1,5,6)) or (x<boost and g8==5)
            if PH2+dpause[0]<=x<PH2+dpause[1]: want_dma=False
            if x==PH2+fl0[0]|1: big=flag_load(0)
            elif x==PH2+fl1[0]|1: big=flag_load(1)
            elif x==PH2+fl0[1]|1: assert published[0]; gap+=flag_check(0); slots=0
            elif x==PH2+fl1[1]|1: assert published[1]; gap+=flag_check(1); slots=0
            if big is None and slots==2 and want_dma and k[0]<len(ops) and op_allowed(ops[k[0]]):
                op=ops[k[0]]; k[0]+=1
                if not skip(op):
                    pre_,ins=op_items(op)
                    if op[0]=='L' and pre_ : assert stmp_busy[0] is None
                    gap+=pre_pending(op,pre_); big=ins; vm.append(op)
            if big is None and slots==2:
                for ph,lastb in ((0,NE-1),(1,8)):
                    idx=[i for i,t in enumerate(vm) if t==('HS',lastb)]
                    if len(idx)==2 and (ph,) not in stx: stx[(ph,)]=x
                    if not published[ph] and len(idx)==2 and x>=stx[(ph,)]+pubdelay:
                        gap+=vmwait(lambda t:t==('HS',lastb)); big=flag_store(ph); break
            singles=False
            hneed=PH2+36*(hl[hi[0]][0]//2) if hi[0]<len(hl) else 10**9
            singles=(x>=PH2 and nready(x,1)>=2 and nready(x,2)<=2)
            if big is None and slots==2 and x<hneed-hurg and not singles: big=try_chain(x,2)
            if big is None and slots==2 and hi[0]<len(hl) and checked[hl[hi[0]][4]] and x>=hneed-hlead and (x>=lasth[0]+hrate or x>=hneed-hurg//2):
                lasth[0]=x
                e,rt,rho,tau,ph=hl[hi[0]]; hi[0]+=1; vm.append(('HL',e,rt))
                if rt==0: gap.append(f's_mov_b32 s48, {tau*2048}')
                big=f'buffer_load_dwordx4 {a(8*(e-9)+4*rt,4)}, v{vHL[rho]}, s[{sWS}:{sWS+3}], s48 offen offset:{rt*1024} {hl_mod}'
            if big is None and slots==2 and not singles: big=try_chain(x,2)
            if big is not None: gap.append(big); slots=0
        while slots>0:
            if k[0]<len(ops) and ops[k[0]][0]=='D' and ops[k[0]][2]==0 and not skip(ops[k[0]]) and op_allowed(ops[k[0]]) and pre_done.get(ops[k[0]],0)<2 and g8 in (0,1,2,6,7) and not (PH2+dpause[0]<=x<PH2+dpause[1]-8):
                n=pre_done.get(ops[k[0]],0); gap.append(op_items(ops[k[0]])[0][n]); pre_done[ops[k[0]]]=n+1; slots-=1; continue
            t=try_chain(x,1)
            if t is None: break
            gap.append(t); slots-=1
        for l in gap: A(l)
    A('s_nop 7')
    while pending(lambda c:True):
        t=try_chain(10**8,1,force=True); A(t)
    assert k[0]==len(ops) and hi[0]==len(hl)
    if nforced[0]: print('forced',nforced[0],file=sys.stderr)
    if stamp:
        for l in do_stamp(): A(l)
        A('s_waitcnt vmcnt(0)')
        for l in do_stamp(): A(l)
        A('s_memrealtime s[90:91]\ns_waitcnt lgkmcnt(0)')
        for i in range(nst[0]): A(f'v_writelane_b32 v17, s{58+2*i}, {i}')
        A(f'v_writelane_b32 v17, s90, 31\nv_writelane_b32 v17, s92, 30')
        A(f's_lshl_b32 s44, s2, 2\ns_add_u32 s44, s44, s3\ns_lshl_b32 s44, s44, 8\ns_add_u32 s44, s44, {WS_STAMP}\nv_lshlrev_b32 v18, 2, v0')
        A(f'buffer_store_dword v17, v18, s[{sWS}:{sWS+3}], s44 offen')
    A(f'{name}_end:\ns_endpgm')
    return A.text(), kernel_desc(name,256+216,256)

def gen_k5c(name='k5_kernel'):
    A=Asm()
    A(f's_cmp_ge_u32 s2, 576\ns_cbranch_scc1 {name}_end')
    A('s_load_dwordx2 s[4:5], s[0:1], 56\ns_load_dwordx2 s[6:7], s[0:1], 72')
    A('v_lshrrev_b32 v2, 6, v0\ns_lshl_b32 s3, s2, 12\nv_readfirstlane_b32 s21, v2\nv_lshlrev_b32 v1, 4, v0\nv_add_u32 v1, s3, v1')
    A('s_mul_i32 s17, s2, 7282\ns_lshr_b32 s17, s17, 16')
    A('s_mul_i32 s18, s17, 9\ns_sub_u32 s18, s2, s18\ns_lshl_b32 s18, s18, 2\ns_add_u32 s18, s18, s21')
    A('s_mul_i32 s19, s18, 7282\ns_lshr_b32 s19, s19, 16\ns_mul_i32 s22, s19, 9\ns_sub_u32 s22, s18, s22')
    A('s_waitcnt lgkmcnt(0)')
    srd(A,8,6,7,WS_BYTES); srd(A,12,4,5,2359296)
    for f in range(4):
        A(f's_mov_b32 s16, {WS_P+f*2359296}\nbuffer_load_dwordx4 v[{8+4*f}:{11+4*f}], v1, s[8:11], s16 offen')
    A('v_bfe_u32 v5, v0, 4, 1\nv_bfe_u32 v6, v0, 5, 1\ns_and_b32 s23, s22, 1\ns_cmp_eq_u32 s22, 8\ns_cselect_b64 vcc, -1, 0')
    A('v_lshl_add_u32 v4, v5, 1, v6\nv_mov_b32 v3, s23\nv_cndmask_b32 v4, v4, v6, vcc\nv_cndmask_b32 v3, v3, v5, vcc')
    A('s_lshr_b32 s23, s22, 1\ns_lshl_b32 s23, s23, 2\ns_mul_i32 s24, s19, 18\ns_add_u32 s23, s23, s24\nv_add_u32 v4, s23, v4')
    A('v_lshrrev_b32 v5, 2, v4\nv_lshlrev_b32 v5, 11, v5\nv_lshl_add_u32 v5, v3, 10, v5\nv_and_b32 v6, 3, v4\nv_lshl_add_u32 v5, v6, 8, v5\nv_and_b32 v6, 15, v0\nv_lshl_add_u32 v5, v6, 4, v5')
    A(f's_mul_i32 s16, s17, 36864\ns_add_u32 s16, s16, {WS_H}\nbuffer_load_dwordx4 v[24:27], v5, s[8:11], s16 offen')
    A('v_bfe_u32 v6, v0, 3, 1\nv_lshl_add_u32 v3, v3, 1, v6\ns_lshl_b32 s19, s17, 2\nv_add_u32 v3, s19, v3')
    A('v_and_b32 v2, 7, v0\nv_lshlrev_b32 v2, 5, v2\nv_and_b32 v6, 31, v3\nv_add_u32 v2, v2, v6\nv_lshrrev_b32 v3, 5, v3\nv_lshl_add_u32 v2, v3, 8, v2')
    A('v_mul_u32_u24 v2, 1152, v2\nv_lshl_add_u32 v2, v4, 4, v2')
    A('s_mov_b32 s20, 0xffff0000')
    for f in range(4):
        A(f's_waitcnt vmcnt({4-f})')
        for j in range(4):
            r=8+4*f+j
            if f==0: A(f'v_lshlrev_b32 v{32+2*j}, 16, v{r}\nv_and_b32 v{33+2*j}, s20, v{r}')
            else: A(f'v_lshlrev_b32 v28, 16, v{r}\nv_and_b32 v29, s20, v{r}\nv_pk_add_f32 v[{32+2*j}:{33+2*j}], v[{32+2*j}:{33+2*j}], v[28:29]')
    for j in range(4): A(f'v_cvt_pk_bf16_f32 v{8+j}, v{32+2*j}, v{33+2*j}')
    A('s_nop 1\nv_permlane16_swap_b32 v8, v10\nv_permlane16_swap_b32 v9, v11\ns_waitcnt vmcnt(0)')
    for j in range(4):
        A(f'v_lshlrev_b32 v28, 16, v{8+j}\nv_and_b32 v29, s20, v{8+j}\nv_lshlrev_b32 v30, 16, v{24+j}\nv_and_b32 v31, s20, v{24+j}')
        A(f'v_pk_add_f32 v[28:29], v[28:29], v[30:31]\nv_cvt_pk_bf16_f32 v{12+j}, v28, v29')
    A('buffer_store_dwordx4 v[12:15], v2, s[12:15], 0 offen')
    A(f'{name}_end:\ns_endpgm')
    return A.text(), kernel_desc(name,40,40,sgpr=32)

def host_streams(wg,wu,wd):
    import numpy as np
    S=np.zeros((16,244*4,64,8),dtype=np.uint16)
    l=np.arange(64); m=(l&15)[:,None]; G=(l>>4)[:,None]; kk=np.arange(8)[None,:]
    for fs in range(16):
        f=0
        for b in range(9):
            for i in range(9):
                for W in (wg,wu):
                    for ph in range(2):
                        for h in range(2):
                            S[fs,f]=W[32*(2*i+h)+8*G+kk, 288*fs+32*b+16*ph+m]; f+=1
        ga,de=fs>>2,fs&3; o=eorder(de)
        for i in range(18):
            for nu in range(9):
                for h in range(2):
                    sg,tau=o[2*i+h]
                    S[fs,f]=wd[288*(4*ga+sg)+32*tau+16*(kk>>2)+4*G+(kk&3), 144*de+16*nu+m]; f+=1
    return S

if __name__=='__main__':
    import json
    cfgs=json.loads(sys.argv[1])
    for fn,kw in cfgs.items():
        b4,d4=gen_k4c(**kw); b5,d5=gen_k5c()
        open(f'dev/{fn}.s','w').write(assemble_file([('k4_kernel',256,256,163840),('k5_kernel',576,256,0)],[('k4_kernel',b4),('k5_kernel',b5)],[d4,d5]))
```

```python
import sys, json; sys.path.insert(0,'dev')
from asmlib import *
from k4c import gen_k4c, gen_k5c
from k123 import gen_k1, gen_k2, gen_k3
HDR=''.join(l for l in open('sequential_preLN__spectral_gfnet__glu_gated_glu__prompt.s.ref').readlines()[:11])
K4=dict(P0=3,hlead=300,hrate=9,hurg=60)
def build(path, stamp=False, k4kw={}, kw1={}, kw2={}, kw3={}):
    b1,d1,l1=gen_k1(stamp=stamp,**kw1); b2,d2,l2=gen_k2(stamp=stamp,**kw2); b3,d3,l3=gen_k3(stamp=stamp,**kw3)
    b4,d4=gen_k4c(stamp=stamp,**{**K4,**k4kw}); b5,d5=gen_k5c()
    L=[('k1_kernel',512+144,256,l1),('k2_kernel',289+144,256,l2),('k3_kernel',256+144,256,l3),('k4_kernel',256,256,163840),('k5_kernel',576,256,0)]
    open(path,'w').write(assemble_file(L,[('k1_kernel',b1),('k2_kernel',b2),('k3_kernel',b3),('k4_kernel',b4),('k5_kernel',b5)],[d1,d2,d3,d4,d5],header=HDR))
if __name__=='__main__':
    build('full_stamp.s',stamp=True)
    build('full.s')
    if len(sys.argv)>1:
        for n,kw in json.loads(sys.argv[1]).items(): build(f'dev/{n}.s',**kw)
```

```python
import sys, json; sys.path.insert(0,'dev')
from asmlib import *
from k4c import gen_k4c, gen_k5c
from k123 import gen_k1, gen_k2, gen_k3
HDR=''.join(l for l in open('sequential_preLN__spectral_gfnet__glu_gated_glu__prompt.s.ref').readlines()[:11])
K4=dict(P0=3,hlead=300,hrate=9,hurg=60)
CL=[['k1',1,0,256,5,15,14],['k1wt',1,256,512,2,15,14],['k1pp',1,512,656,3,15,14],['k2',2,0,289,5,15,14],['k2pp',2,289,433,3,15,14],['k3',3,0,256,6,15,14],['k3pp',3,256,400,3,15,14],['k4',0,0,256,15,31,30]]
def build(path, stamp=False, k4kw={}, kw1={}, kw2={}, kw3={}):
    b1,d1,l1,g1=gen_k1(stamp=stamp,**kw1); b2,d2,l2,g2=gen_k2(stamp=stamp,**kw2); b3,d3,l3,g3=gen_k3(stamp=stamp,**kw3)
    b4,d4=gen_k4c(stamp=stamp,**{**K4,**k4kw}); b5,d5=gen_k5c()
    CL=[c for c in [['k1',1,0,256,5,15,14],['k1wt',1,256,512,2,15,14],['k1pp',1,512,656,3,15,14],['k2',2,0,289,5,15,14],['k2pp',2,289,g2,3,15,14],['k3',3,0,256,6,15,14],['k3pp',3,256,g3,3,15,14],['k4',0,0,256,15,31,30]] if c[3]>c[2] and not (c[0]=='k1pp' and (kw1.get('plan',[['p']])+[['x']])[0][0]!='p')]
    L=[('k1_kernel',g1,256,l1),('k2_kernel',g2,256,l2),('k3_kernel',g3,256,l3),('k4_kernel',256,256,163840),('k5_kernel',576,256,0)]
    open(path,'w').write(assemble_file(L,[('k1_kernel',b1),('k2_kernel',b2),('k3_kernel',b3),('k4_kernel',b4),('k5_kernel',b5)],[d1,d2,d3,d4,d5],header=HDR+('; classes '+json.dumps(CL)+'\n' if stamp else '')))
if __name__=='__main__':
    build('full_stamp.s',stamp=True)
    build('full.s')
    if len(sys.argv)>1:
        for n,kw in json.loads(sys.argv[1]).items(): build(f'dev/{n}.s',**kw)
```

```python
import sys, math, struct; sys.path.insert(0,'dev')
from asmlib import *
from k4 import srd, WS_T, WS_WP, WS_Y, WS_H, WS_L2F, WS_BYTES
from k4c import WS_S, WS_FL, WS_STAMP, SLEN, PHS, E0
def fh(x): return '0x%08x'%struct.unpack('<I',struct.pack('<f',x))[0]
WPB=9344
OOB=0x7ff00000
def pr(r): return f'v[{r}:{r+1}]'
def allreduce32(A, r, t):
    for m in ('quad_perm:[1,0,3,2]','quad_perm:[2,3,0,1]','row_half_mirror','row_mirror'):
        A(f's_nop 1\nv_add_f32_dpp v{r}, v{r}, v{r} {m} row_mask:0xf bank_mask:0xf')
    A(f'v_mov_b32 v{t}, v{r}\ns_nop 1\nv_permlane16_swap_b32 v{t}, v{r}\ns_nop 0\nv_add_f32 v{r}, v{r}, v{t}')
def rot_offsets(A, q, o, t):
    A(f'v_lshlrev_b32 v{t}, 1, v{q}\nv_mul_u32_u24 v{t+1}, 57, v{t}\nv_lshrrev_b32 v{t+1}, 9, v{t+1}\nv_mul_u32_u24 v{t+1}, 9, v{t+1}\nv_sub_u32 v{t}, v{t+1}, v{t}')
    A(f'v_lshlrev_b32 v{t}, 7, v{t}')
    for j in range(9):
        A(f'v_add_u32 v{o+j}, {128*j}, v{t}\nv_add_u32 v{t+1}, {128*j+1152}, v{t}\nv_min_u32 v{o+j}, v{o+j}, v{t+1}')
K9=dict(c1=math.cos(2*math.pi/9),c2=math.cos(4*math.pi/9),c4=math.cos(8*math.pi/9),s1=math.sin(2*math.pi/9),s2=math.sin(4*math.pi/9),s4=math.sin(8*math.pi/9),h3=math.sqrt(3)/2,mh=-0.5)
def k9_load(A, sb):
    m={}
    for i,(k,val) in enumerate(K9.items()):
        A(f's_mov_b32 s{sb+i}, {fh(val)}'); m[k]=sb+i
    return m
def sc(sreg, pos, n):
    base=sreg&~1; hi=sreg&1
    sel=[0]*n; selh=[1]*n; sel[pos]=hi; selh[pos]=hi
    return f's[{base}:{base+1}]', sel, selh
def lst(x): return '['+','.join(map(str,x))+']'
def pkfma(A,d,x,sreg,c,neg=False):
    o,sel,selh=sc(sreg,1,3); n='[1,0,0]' if neg else '[0,0,0]'
    A(f'v_pk_fma_f32 {pr(d)}, {pr(x)}, {o}, {pr(c)} op_sel:{lst(sel)} op_sel_hi:{lst(selh)} neg_lo:{n} neg_hi:{n}')
def pkmul(A,d,x,sreg,neg=False):
    o,sel,selh=sc(sreg,1,2); n='[1,0]' if neg else '[0,0]'
    A(f'v_pk_mul_f32 {pr(d)}, {pr(x)}, {o} op_sel:{lst(sel)} op_sel_hi:{lst(selh)} neg_lo:{n} neg_hi:{n}')
def pkadd(A,d,x,y,neg=False):
    n='[0,1]' if neg else '[0,0]'
    A(f'v_pk_add_f32 {pr(d)}, {pr(x)}, {pr(y)} neg_lo:{n} neg_hi:{n}')
def trig(kind,n):
    n%=9
    if kind=='c':
        return ({1:'c1',2:'c2',4:'c4'}[min(n,9-n)],False)
    return ({1:'s1',2:'s2',4:'s4'}[min(n,9-n)], n>4)
def dft9_core(A,K,x0,s,d,R,I,t,negI):
    a_,e_,S_=t
    pkfma(A,a_,s[3],K['mh'],x0)
    pkmul(A,e_,d[3],K['h3'],neg=negI)
    pkadd(A,S_,s[1],s[2]);
    for k in (1,2,4):
        c,_=trig('c',k); pkfma(A,R[k],s[1],K[c],a_)
    pkadd(A,S_,S_,s[4])
    for k in (1,2,4):
        c,ng=trig('s',k)
        o,sel,selh=sc(K[c],1,3); n1=int(ng^negI); n3=int(k==2)
        A(f'v_pk_fma_f32 {pr(I[k])}, {pr(d[1])}, {o}, {pr(e_)} op_sel:{lst(sel)} op_sel_hi:{lst(selh)} neg_lo:[{n1},0,{n3}] neg_hi:[{n1},0,{n3}]')
    pkadd(A,a_,x0,s[3])
    pkadd(A,e_,d[1],d[2],neg=True)
    for b in (2,4):
        for k in (1,2,4):
            c,_=trig('c',b*k); pkfma(A,R[k],s[b],K[c],R[k])
        for k in (1,2,4):
            c,ng=trig('s',b*k); pkfma(A,I[k],d[b],K[c],I[k],neg=ng^negI)
    pkadd(A,e_,e_,d[4])
    pkfma(A,R[3],S_,K['mh'],a_)
    pkadd(A,R[0],a_,S_)
    pkmul(A,I[3],e_,K['h3'],neg=negI)
def layernorm(A,P,D,t,sMASK,sINV,keep_packed=None,unpack=True):
    pkadd(A,t,P[0],P[1]); pkadd(A,t+2,P[2],P[3]); pkadd(A,t+4,P[4],P[5]); pkadd(A,t,t,P[6]); pkadd(A,t+2,t+2,P[7]); pkadd(A,t+4,t+4,P[8])
    pkadd(A,t,t,t+2); pkadd(A,t,t,t+4)
    A(f'v_add_f32 v{t}, v{t}, v{t+1}')
    allreduce32(A,t,t+1)
    A(f'v_mul_f32 v{t}, s{sINV}, v{t}')
    for b in range(9): A(f'v_pk_add_f32 {pr(D[b])}, {pr(P[b])}, {pr(t)} op_sel_hi:[1,0] neg_lo:[0,1] neg_hi:[0,1]')
    A(f'v_pk_mul_f32 {pr(t+2)}, {pr(D[0])}, {pr(D[0])}\nv_pk_mul_f32 {pr(t+4)}, {pr(D[1])}, {pr(D[1])}')
    for b in range(2,9): A(f'v_pk_fma_f32 {pr(t+2+2*(b&1))}, {pr(D[b])}, {pr(D[b])}, {pr(t+2+2*(b&1))}')
    pkadd(A,t+2,t+2,t+4)
    A(f'v_add_f32 v{t+2}, v{t+2}, v{t+3}')
    A(f'v_cvt_pk_bf16_f32 v{t}, v{t}, v{t}\nv_and_b32 v{t}, s{sMASK}, v{t}')
    allreduce32(A,t+2,t+3)
    for b in range(9): A(f'v_pk_add_f32 {pr(D[b])}, {pr(P[b])}, {pr(t)} op_sel_hi:[1,0] neg_lo:[0,1] neg_hi:[0,1]')
    A(f'v_mul_f32 v{t+2}, s{sINV}, v{t+2}\nv_cvt_pk_bf16_f32 v{t+2}, v{t+2}, v{t+2}\nv_and_b32 v{t+2}, s{sMASK}, v{t+2}')
    A(f'v_add_f32 v{t+2}, {fh(1e-5)}, v{t+2}\nv_cvt_pk_bf16_f32 v{t+2}, v{t+2}, v{t+2}\nv_and_b32 v{t+2}, s{sMASK}, v{t+2}')
    A(f'v_sqrt_f32 v{t+2}, v{t+2}')
    for b in range(9): A(f'v_cvt_pk_bf16_f32 v{D[b]}, v{D[b]}, v{D[b]+1}')
    A(f'v_cvt_pk_bf16_f32 v{t+2}, v{t+2}, v{t+2}\nv_and_b32 v{t+2}, s{sMASK}, v{t+2}\nv_rcp_f32 v{t+2}, v{t+2}')
    for b in range(9): A(f'v_and_b32 v{D[b]+1}, s{sMASK}, v{D[b]}\nv_lshlrev_b32 v{D[b]}, 16, v{D[b]}')
    for b in range(9): A(f'v_pk_mul_f32 {pr(D[b])}, {pr(D[b])}, {pr(t+2)} op_sel_hi:[1,0]')
    for b in range(9):
        dst=keep_packed[b] if keep_packed else D[b]
        A(f'v_cvt_pk_bf16_f32 v{dst}, v{D[b]}, v{D[b]+1}')
    if unpack:
        for b in range(9):
            src=keep_packed[b] if keep_packed else D[b]
            A(f'v_lshlrev_b32 v{P[b]}, 16, v{src}\nv_and_b32 v{P[b]+1}, s{sMASK}, v{src}')
def const64(A, lane, sW, C, S, NS, t, sSGN):
    A(f'v_and_b32 v{t}, 15, v{lane}\ns_lshl_b32 s31, s{sW}, 4\nv_add_u32 v{t}, s31, v{t}')
    A(f'v_and_b32 v{t+3}, 1, v{t}\nv_mul_lo_u32 v{t+3}, v{t+3}, s{sSGN}')
    A(f'v_cvt_f32_u32 v{t}, v{t}\nv_mul_f32 v{t}, {fh(1/64)}, v{t}')
    A(f'v_lshrrev_b32 v{t+1}, 4, v{lane}\nv_lshlrev_b32 v{t+1}, 3, v{t+1}\nv_cvt_f32_u32 v{t+1}, v{t+1}\nv_mul_f32 v{t+1}, v{t+1}, v{t}')
    a0=t+4
    for k in range(8): A(f'v_fmamk_f32 v{a0+k}, v{t}, {fh(float(k))}, v{t+1}')
    for k in range(8): A(f'v_fract_f32 v{a0+k}, v{a0+k}')
    for k in range(8): A(f'v_cos_f32 v{a0+8+k}, v{a0+k}')
    for k in range(8): A(f'v_sin_f32 v{a0+k}, v{a0+k}')
    for j in range(4): A(f'v_cvt_pk_bf16_f32 v{C+j}, v{a0+8+2*j}, v{a0+9+2*j}')
    for j in range(4): A(f'v_cvt_pk_bf16_f32 v{S+j}, v{a0+2*j}, v{a0+1+2*j}')
    for j in range(4): A(f'v_xor_b32 v{C+4+j}, v{t+3}, v{C+j}\nv_xor_b32 v{S+4+j}, v{t+3}, v{S+j}')
    for j in range(8): A(f'v_xor_b32 v{NS+j}, s{sSGN}, v{S+j}')
def mfma16(A,d,a_,b_,first): A(f'v_mfma_f32_16x16x32_bf16 {v(d,4)}, {v(a_,4)}, {v(b_,4)}, {"0" if first else v(d,4)}')
def code_prefetch(A,name,vt,vd,sp=40):
    A(f's_getpc_b64 s[{sp}:{sp+1}]\nv_lshlrev_b32 v{vt}, 7, v0\nv_min_u32 v{vt}, {name}_end-{name}-128, v{vt}\nglobal_load_dword v{vd}, v{vt}, s[{sp}:{sp+1}]')
class Stamps:
    def __init__(s,A,on,idx): s.A=A; s.on=on; s.n=0; s.idx=idx
    def __call__(s):
        if s.on: s.A(f's_memtime s[{60+2*s.n}:{61+2*s.n}]'); s.n+=1
    def start(s):
        if s.on: s.A('s_memrealtime s[92:93]'); s()
    def finish(s,sws,sw):
        if not s.on: return
        A=s.A; A('s_waitcnt vmcnt(0)'); s()
        A('s_memrealtime s[90:91]\ns_waitcnt lgkmcnt(0)')
        for i in range(s.n): A(f'v_writelane_b32 v1, s{60+2*i}, {i}')
        A('v_writelane_b32 v1, s90, 15\nv_writelane_b32 v1, s92, 14')
        A(f's_lshl_b32 s44, s2, 2\ns_add_u32 s44, s44, s{sw}\ns_lshl_b32 s44, s44, 8\ns_add_u32 s44, s44, {WS_STAMP+s.idx*0x100000}')
        A(f'v_mbcnt_lo_u32_b32 v2, -1, 0\nv_mbcnt_hi_u32_b32 v2, -1, v2\nv_lshlrev_b32 v2, 2, v2\nbuffer_store_dword v1, v2, s[{sws}:{sws+3}], s44 offen')


def gen_extra(A, name, first, plan, stamp, idx, sm, lm=''):
    for i,(kind,arg) in enumerate(plan):
        lab=f'{name}_pp' if i==0 else f'{name}_pp{i}x'
        nxt=f'{name}_pp{i+1}x' if i+1<len(plan) else f'{name}_end'
        if kind=='p':
            gen_prep(A,name,first,arg,Stamps(A,stamp,idx),lab,nxt,sm,lm); first+=144
        else:
            A(f's_endpgm\n{lab}:\ns_cmp_ge_u32 s2, {first+81}\ns_cbranch_scc1 {nxt}')
            A('s_load_dwordx4 s[32:35], s[0:1], 32\ns_load_dwordx2 s[36:37], s[0:1], 48')
            A(f's_sub_u32 s4, s2, {first}\ns_lshl_b32 s4, s4, 16\nv_lshlrev_b32 v1, 7, v0\ns_add_u32 s5, s4, 0x8000\ns_waitcnt lgkmcnt(0)')
            for m in arg:
                srd(A,8,32+2*m,33+2*m,5308416)
                A(f'buffer_load_dword v{2+2*m}, v1, s[8:11], s4 offen\nbuffer_load_dword v{3+2*m}, v1, s[8:11], s5 offen')
            first+=81
    if not plan: A(f'{name}_pp:')
    return first
def gen_prep(A, name, first, mat, ST, lab, nxt, sm, lm):
    A(f's_endpgm\n{lab}:')
    A(f's_cmp_ge_u32 s2, {first+144}\ns_cbranch_scc1 {nxt}')
    A(f's_load_dwordx2 s[32:33], s[0:1], {32+8*mat}\ns_load_dwordx2 s[38:39], s[0:1], 72')
    ST.start()
    A(f'v_lshrrev_b32 v1, 6, v0\ns_sub_u32 s4, s2, {first}\nv_readfirstlane_b32 s3, v1\nv_and_b32 v2, 63, v0\nv_lshlrev_b32 v3, 4, v2')
    if mat<2:
        for t in range(9):
            A(f'v_add_u32 v4, {64*t}, v2\nv_mul_u32_u24 v5, 58255, v4\nv_lshrrev_b32 v5, 22, v5\nv_mul_u32_u24 v6, {9216-72*16}, v5\nv_lshl_add_u32 v{8+t}, v4, 4, v6')
        A(f's_lshr_b32 s5, s4, 3\ns_and_b32 s6, s4, 7\ns_lshl_b32 s7, s5, 2\ns_add_u32 s7, s7, s3\ns_mul_i32 s7, s7, {8*9216}\ns_mul_i32 s20, s6, 1152\ns_add_u32 s7, s7, s20')
    else:
        A('s_mul_i32 s7, s4, 36864\ns_mul_i32 s20, s3, 9216\ns_add_u32 s7, s7, s20')
    A('s_mul_i32 s21, s3, 9216\ns_waitcnt lgkmcnt(0)')
    srd(A,8,32,33,5308416); srd(A,12,38,39,WS_BYTES)
    for t in range(9):
        if mat<2: A(f's_add_u32 m0, s21, {1024*t}\ns_nop 0\nbuffer_load_dwordx4 v{8+t}, s[8:11], s7 offen {lm} lds')
        else: A(f's_add_u32 m0, s21, {1024*t}\ns_add_u32 s20, s7, {1024*t}\nbuffer_load_dwordx4 v3, s[8:11], s20 offen {lm} lds')
    if mat==0:
        A(f's_cmp_lg_u32 s4, 0\ns_cbranch_scc1 {name}_pp1\nv_mov_b32 v20, 0\nv_mov_b32 v21, 0\nv_mov_b32 v22, 0\nv_mov_b32 v23, 0\nv_lshlrev_b32 v4, 4, v0')
        for i in range(3): A(f's_mov_b32 s20, {WS_FL+4096*i}\nbuffer_store_dwordx4 v[20:23], v4, s[12:15], s20 offen')
        A(f'{name}_pp1:')
    A('v_lshrrev_b32 v4, 4, v2\nv_bfe_u32 v5, v2, 2, 2\nv_and_b32 v6, 3, v2')
    A(f'v_lshl_add_u32 v4, v4, {3 if mat<2 else 2}, v5\nv_mul_u32_u24 v4, 1152, v4\nv_lshl_add_u32 v4, v6, 3, v4\ns_mul_i32 s20, s3, 288\nv_add_u32 v4, s20, v4')
    if mat<2:
        A(f's_lshr_b32 s20, s3, 1\ns_lshl_b32 s6, s6, 1\ns_add_u32 s6, s6, s20\ns_mul_i32 s6, s6, {SLEN}')
        A(f's_lshr_b32 s24, s5, 1\ns_lshl_b32 s24, s24, 13\ns_add_u32 s6, s6, s24\ns_and_b32 s20, s5, 1\ns_lshl_b32 s20, s20, 10\ns_add_u32 s6, s6, s20\ns_add_u32 s6, s6, {WS_S+mat*4096}')
        A('s_and_b32 s22, s3, 1\ns_mul_i32 s22, s22, 9')
    else:
        A('s_mul_i32 s5, s4, 7282\ns_lshr_b32 s5, s5, 16\ns_mul_i32 s6, s5, 9\ns_sub_u32 s6, s4, s6')
        A('s_and_b32 s20, s5, 3\ns_sub_u32 s20, s20, s3\ns_and_b32 s20, s20, 3')
        for (lo,hi,base,reg) in EPH:
            A(f's_mul_i32 s{reg}, s20, {hi-lo}\ns_add_u32 s{reg}, s{reg}, {base-(hi-lo)-lo}')
        A('s_mov_b32 s22, s24')
        for (lo,hi,base,reg) in EPH[1:]: A(f's_cmp_ge_u32 s6, {lo}\ns_cselect_b32 s22, s{reg}, s22')
        A('s_cmp_eq_u32 s20, 0\ns_cselect_b32 s22, 0, s22\ns_add_u32 s22, s22, s6')
        A(f's_lshr_b32 s23, s22, 1\ns_mul_i32 s23, s23, 18432\ns_and_b32 s24, s22, 1\ns_lshl_b32 s24, s24, 10\ns_add_u32 s23, s23, s24')
        A(f's_lshl_b32 s24, s22, 10\ns_add_u32 s24, s24, {(E0*9-E0)*1024}\ns_cmp_ge_u32 s22, {E0}\ns_cselect_b32 s23, s24, s23\ns_cselect_b32 s27, {(36-E0)*1024}, 2048'.replace(', 2048',', s28').replace('s_lshl_b32 s24','s_mov_b32 s28, 2048\ns_lshl_b32 s24'))
        A(f's_and_b32 s5, s5, 12\ns_add_u32 s5, s5, s3\ns_mul_i32 s6, s5, {SLEN}\ns_add_u32 s6, s6, s23\ns_add_u32 s6, s6, {WS_S+648*1024}')
    A('s_waitcnt vmcnt(0)\ns_barrier')
    ST()
    for t in range(9):
        if t==7: A('s_waitcnt lgkmcnt(8)')
        for q in range(2): A(f'ds_read_b64_tr_b16 v[{24+4*t+2*q}:{25+4*t+2*q}], v4 offset:{32*t+q*(4608 if mat<2 else 18432)}')
    for t in range(9):
        if mat<2: A(f's_add_u32 s20, s22, {t}\ns_lshr_b32 s25, s20, 1\ns_mul_i32 s23, s25, 73728\ns_lshl_b32 s26, s25, 13\ns_add_u32 s26, s26, s24\ns_cmp_lt_u32 s25, 2\ns_cselect_b32 s23, s26, s23\ns_and_b32 s20, s20, 1\ns_lshl_b32 s20, s20, 11\ns_add_u32 s20, s20, s23\ns_add_u32 s20, s20, s6')
        else: A(f's_mul_i32 s20, s27, {t}\ns_add_u32 s20, s20, s6')
        A(f's_waitcnt lgkmcnt({min(16-2*t,8) if t>=3 else 8})')
        A(f'buffer_store_dwordx4 {v(24+4*t,4)}, v3, s[12:15], s20 offen {sm}')
    ST.finish(12,3)
EPH=[(lo,hi,e0,24+i) for i,(lo,hi,e0) in enumerate(PHS)]

def gen_k1(name='k1_kernel', stamp=False, plan=[('p',0)], sm='', lm='', xm='', wm='', psm='', rot=0):
    A=Asm(); ST=Stamps(A,stamp,1)
    RS=1312
    if rot: A(f's_cmp_ge_u32 s2, {512+rot}\ns_cbranch_scc1 {name}_end\ns_sub_u32 s2, s2, {rot}\ns_cselect_b32 s3, {512+rot}, 0\ns_add_u32 s2, s2, s3')
    A(f's_cmp_ge_u32 s2, 512\ns_cbranch_scc1 {name}_pp')
    A('s_load_dwordx4 s[32:35], s[0:1], 0\ns_load_dwordx2 s[36:37], s[0:1], 16\ns_load_dwordx2 s[38:39], s[0:1], 72')
    ST.start()
    code_prefetch(A,name,1,127)
    A('v_lshrrev_b32 v1, 6, v0\ns_nop 0\nv_readfirstlane_b32 s3, v1')
    A(f's_cmp_ge_u32 s2, 256\ns_cbranch_scc1 {name}_wt')
    A('v_and_b32 v0, 63, v0')
    sMASK,sSGN,sINV=24,26,25
    A(f's_mov_b32 s{sMASK}, 0xffff0000\ns_mov_b32 s{sSGN}, 0x80008000\ns_mov_b32 s{sINV}, {fh(1/576)}')
    Q,ROW=2,3; O=4
    A(f'v_and_b32 v{Q}, 31, v0\nv_lshrrev_b32 v{ROW}, 5, v0\ns_lshl_b32 s4, s3, 1\nv_add_u32 v{ROW}, s4, v{ROW}')
    rot_offsets(A,Q,O,14)
    A(f's_lshr_b32 s4, s2, 5\ns_lshl_b32 s4, s4, 8\ns_and_b32 s5, s2, 31\ns_add_u32 s4, s4, s5\ns_mul_i32 s4, s4, 1152')
    A(f'v_mul_u32_u24 v14, {32*1152}, v{ROW}\nv_lshl_add_u32 v14, v{Q}, 2, v14')
    for j in range(9): A(f'v_add_u32 v{O+j}, v14, v{O+j}')
    A('s_waitcnt lgkmcnt(0)')
    srd(A,8,32,33,2359296); srd(A,12,38,39,WS_BYTES)
    X=16
    for j in range(9): A(f'buffer_load_dword v{X+j}, v{O+j}, s[8:11], s4 offen {xm}')
    ST()
    C,S,NS=28,36,44
    const64(A,0,3,C,S,NS,56,sSGN)
    K=k9_load(A,48)
    WA,RA=4,5
    A(f'v_mul_u32_u24 v{WA}, {RS}, v{ROW}\nv_lshl_add_u32 v{WA}, v{Q}, 2, v{WA}')
    A(f'v_and_b32 v14, 7, v0\nv_mul_u32_u24 v{RA}, {RS}, v14\nv_lshrrev_b32 v15, 4, v0\nv_lshl_add_u32 v{RA}, v15, 4, v{RA}')
    A(f'v_bfe_u32 v14, v0, 3, 1\nv_lshl_add_u32 v6, v14, 8, v{RA}')
    A(f'v_and_b32 v14, 15, v0\ns_lshl_b32 s5, s3, 4\nv_add_u32 v14, s5, v14')
    A('v_mul_u32_u24 v7, 9, v14\nv_lshrrev_b32 v13, 5, v0\nv_lshl_add_u32 v13, v13, 6, v7')
    A('v_and_b32 v15, 16, v0')
    A(f's_mul_i32 s6, s2, 9216\ns_add_u32 s6, s6, {WS_T}')
    for mu in range(2):
        A(f'v_add_u32 v56, {64*(1+2*mu)}, v13\nv_subrev_u32 v57, 576, v56\nv_min_u32 v56, v56, v57')
        A(f'v_sub_u32 v57, 576, v56\nv_cmp_lt_u32 vcc, v57, v56\nv_min_u32 v56, v56, v57\nv_mov_b32 v57, s{sSGN}')
        A(f'v_cndmask_b32 v{11+mu}, 0, v57, vcc\nv_lshl_add_u32 v{8+mu}, v56, 5, v15')
    A('v_lshl_add_u32 v10, v7, 5, v15')
    A(f'v_mov_b32 v57, {OOB}')
    A('v_cmp_lt_u32 vcc, 31, v14\ns_nop 1\nv_cndmask_b32 v10, v10, v57, vcc')
    A('v_lshl_add_u32 v56, v14, 6, v0\nv_cmp_eq_u32 vcc, 16, v56\ns_nop 1\nv_cndmask_b32 v10, v10, v57, vcc')
    A('v_cmp_lt_u32 vcc, 31, v0\ns_nop 1\nv_cndmask_b32 v10, v10, v57, vcc')
    A('v_cmp_eq_u32 vcc, 0x800, v56\ns_nop 1\nv_cndmask_b32 v10, v10, 16, vcc')
    P=[56+2*b for b in range(9)]; D=[74+2*b for b in range(9)]; T=92
    A('s_waitcnt vmcnt(0)')
    ST()
    for j in range(9): A(f'v_lshlrev_b32 v{P[j]}, 16, v{X+j}\nv_and_b32 v{P[(j+1)%9]+1}, s{sMASK}, v{X+j}')
    layernorm(A,P,D,T,sMASK,sINV)
    s_={b:D[b-1] for b in range(1,5)}; d_={b:D[b+3] for b in range(1,5)}
    for b in range(1,5): pkadd(A,s_[b],P[b],P[9-b]); pkadd(A,d_[b],P[b],P[9-b],neg=True)
    R={k:P[1+k] for k in range(4)}; R[4]=D[8]; I={k:P[4+k] for k in range(1,5)}
    dft9_core(A,K,P[0],s_,d_,R,I,(T,T+2,T+4),True)
    slot={0:R[0]}
    for k in range(1,5): slot[2*k-1]=R[k]; slot[2*k]=I[k]
    for sg in range(9): A(f'v_cvt_pk_bf16_f32 v{X+sg}, v{slot[sg]}, v{slot[sg]+1}')
    for sg in range(9): A(f'ds_write_b32 v{WA}, v{X+sg} offset:{sg*128}')
    A('s_waitcnt lgkmcnt(0)\ns_barrier')
    ST()
    F=56
    for mu in range(2):
        for part in range(2):
            for t in range(2): A(f'ds_read_b128 {v(F+16*mu+8*part+4*t,4)}, v6 offset:{(1+4*mu+part)*128+64*t}')
    for t in range(2): A(f'ds_read_b128 {v(F+32+4*t,4)}, v{RA} offset:{64*t}')
    ACC=96
    for mu in range(2):
        fr,fi=F+16*mu,F+16*mu+8
        A(f's_waitcnt lgkmcnt({6-4*mu})')
        for t in range(2):
            mfma16(A,ACC+8*mu,fr+4*t,C+4*t,t==0); mfma16(A,ACC+8*mu+4,fi+4*t,C+4*t,t==0)
        for t in range(2):
            mfma16(A,ACC+8*mu,fi+4*t,S+4*t,False); mfma16(A,ACC+8*mu+4,fr+4*t,NS+4*t,False)
    A('s_waitcnt lgkmcnt(0)')
    for t in range(2):
        mfma16(A,ACC+16,F+32+4*t,C+4*t,t==0); mfma16(A,ACC+20,F+32+4*t,NS+4*t,t==0)
    for g in range(3):
        o=16+4*g; ac=ACC+8*g
        if g==2: A('s_nop 3')
        for j in range(4): A(f'v_cvt_pk_bf16_f32 v{o+j}, v{ac+2*j}, v{ac+2*j+1}')
        if g<2: A(f'v_xor_b32 v{o+2}, v{11+g}, v{o+2}\nv_xor_b32 v{o+3}, v{11+g}, v{o+3}')
        A(f's_nop 1\nv_permlane16_swap_b32 v{o}, v{o+2}\nv_permlane16_swap_b32 v{o+1}, v{o+3}')
        A(f'buffer_store_dwordx4 {v(o,4)}, v{8+g}, s[12:15], s6 offen {sm}')
    ST.finish(12,3)
    A('s_endpgm')
    A(f'{name}_wt:')
    A('s_sub_u32 s4, s2, 256\ns_lshr_b32 s5, s4, 2\ns_and_b32 s6, s4, 3\ns_lshl_b32 s6, s6, 8\ns_add_u32 s5, s5, s6\ns_mul_i32 s5, s5, 578')
    A(f's_mul_i32 s7, s4, {WPB}\ns_add_u32 s7, s7, {WS_WP}')
    A('v_lshlrev_b32 v2, 1, v0\nv_lshlrev_b32 v3, 5, v0')
    A(f'v_add_u32 v4, 512, v2\nv_add_u32 v5, 8192, v3\nv_mov_b32 v6, {OOB}\nv_cmp_lt_u32 vcc, 32, v0\ns_nop 1\nv_cndmask_b32 v4, v4, v6, vcc\nv_cndmask_b32 v5, v5, v6, vcc')
    A('s_waitcnt lgkmcnt(0)')
    srd(A,8,34,35,2048*578); srd(A,16,36,37,2048*578); srd(A,12,38,39,WS_BYTES)
    def wload(va,base):
        for part,sr in ((0,8),(1,16)):
            for e in range(8):
                t,r=e>>2,e&3
                A(f's_add_u32 s20, s5, {(1024*t+64*r)*578}')
                A(f'buffer_load_ushort v{base+8*part+e}, v{va}, s[{sr}:{sr+3}], s20 offen {wm}')
    def wpack(base,dst):
        for j in range(8): A(f'v_lshl_or_b32 v{dst+j}, v{base+2*j+1}, 16, v{base+2*j}')
    wload(2,24)
    A(f's_cmp_lg_u32 s3, 0\ns_cbranch_scc1 {name}_wt1')
    wload(4,40)
    A('s_waitcnt vmcnt(0)'); wpack(40,16)
    A(f'buffer_store_dwordx4 v[16:19], v5, s[12:15], s7 offen {sm}\nbuffer_store_dwordx4 v[20:23], v5, s[12:15], s7 offen offset:16 {sm}')
    A(f'{name}_wt1:')
    A('s_waitcnt vmcnt(0)'); wpack(24,8)
    A(f'buffer_store_dwordx4 v[8:11], v3, s[12:15], s7 offen {sm}\nbuffer_store_dwordx4 v[12:15], v3, s[12:15], s7 offen offset:16 {sm}')
    S2=Stamps(A,stamp,1); S2.n=1; S2.finish(12,3)
    grid=gen_extra(A,name,512,plan,stamp,1,psm,lm)
    A(f'{name}_end:\ns_endpgm')
    return A.text(), kernel_desc(name,128,128), (36864 if any(k=='p' for k,_ in plan) else 8*RS), grid

def gen_k2(name='k2_kernel', stamp=False, plan=[('p',1)], sm='', lm='', inplace=False, psm='', rot=0):
    A=Asm(); ST=Stamps(A,stamp,2)
    US=160; UB=8192
    if rot: A(f's_cmp_ge_u32 s2, {289+rot}\ns_cbranch_scc1 {name}_end\ns_sub_u32 s2, s2, {rot}\ns_cselect_b32 s3, {289+rot}, 0\ns_add_u32 s2, s2, s3')
    A(f's_cmp_ge_u32 s2, 289\ns_cbranch_scc1 {name}_pp')
    A('s_load_dwordx2 s[38:39], s[0:1], 72')
    ST.start()
    code_prefetch(A,name,1,167)
    A('v_lshrrev_b32 v1, 6, v0\ns_nop 0\nv_readfirstlane_b32 s3, v1\nv_and_b32 v0, 63, v0')
    sMASK,sSGN=24,26
    A(f's_mov_b32 s{sMASK}, 0xffff0000\ns_mov_b32 s{sSGN}, 0x80008000')
    A('s_and_b32 s4, s2, 7\ns_mul_i32 s4, s4, 36\ns_lshr_b32 s5, s2, 3\ns_add_u32 s4, s4, s5')
    A('s_cmp_eq_u32 s2, 288\ns_cselect_b32 s4, 288, s4')
    A('s_lshl_b32 s5, s4, 5\ns_cmp_eq_u32 s2, 288\ns_cselect_b32 s5, 16, s5')
    A('s_cmp_lt_u32 s5, 32\ns_cselect_b32 s6, 1, 0')
    A('s_mul_i32 s7, s4, 7282\ns_lshr_b32 s7, s7, 16\ns_mul_i32 s7, s7, 9\ns_sub_u32 s7, s4, s7\ns_cmp_ge_u32 s7, 5\ns_cselect_b32 s27, 0x80008000, 0')
    N,G=2,3
    A(f'v_and_b32 v{N}, 15, v0\nv_lshrrev_b32 v{G}, 4, v0')
    A(f's_and_b32 s20, s3, 1\ns_lshl_b32 s20, s20, 7\ns_lshr_b32 s21, s3, 1\ns_lshl_b32 s21, s21, 4\ns_add_u32 s20, s20, s21')
    A(f'v_lshl_add_u32 v4, v{G}, 5, v{N}\nv_add_u32 v4, s20, v4\nv_mul_u32_u24 v4, 9216, v4')
    A(f's_cmp_eq_u32 s6, 1\ns_cselect_b32 s21, {OOB}, 16\nv_add_u32 v5, s21, v4')
    A(f's_add_u32 s22, s5, {WS_T}')
    A(f's_lshl_b32 s20, s3, 6\nv_lshl_add_u32 v6, v{N}, 2, v{G}\nv_add_u32 v6, s20, v6\nv_mul_u32_u24 v6, {WPB}, v6')
    A(f's_lshl_b32 s23, s4, 5\ns_add_u32 s23, s23, {WS_WP}')
    A('s_waitcnt lgkmcnt(0)')
    srd(A,12,38,39,WS_BYTES)
    A('s_lshl_b32 s20, s3, 11\ns_mov_b32 m0, s20\ns_nop 0\nbuffer_load_dwordx4 v4, s[12:15], s22 offen lds')
    A('s_add_u32 m0, s20, 1024\ns_nop 0\nbuffer_load_dwordx4 v5, s[12:15], s22 offen lds')
    WR,WI=8,12
    A(f'buffer_load_dwordx4 {v(WR,4)}, v6, s[12:15], s23 offen\nbuffer_load_dwordx4 {v(WI,4)}, v6, s[12:15], s23 offen offset:16')
    ST()
    C,S,NS=16,24,32
    const64(A,0,3,C,S,NS,100,sSGN)
    C3,S3,NS3=40,48,56
    t=100
    A(f'v_cvt_f32_u32 v{t}, v{N}\nv_mul_f32 v{t}, {fh(1/32)}, v{t}\nv_lshlrev_b32 v{t+1}, 2, v{G}\nv_cvt_f32_u32 v{t+2}, v{t+1}\nv_mul_f32 v{t+1}, v{t+2}, v{t}')
    a0=t+4
    for k in range(8): A(f'v_fmamk_f32 v{a0+k}, v{t}, {fh(float(16*(k>>2)+(k&3)))}, v{t+1}')
    for k in range(8): A(f'v_fract_f32 v{a0+k}, v{a0+k}')
    for k in range(8): A(f'v_cos_f32 v{a0+8+k}, v{a0+k}')
    for k in range(8): A(f'v_sin_f32 v{a0+k}, v{a0+k}')
    for j in range(4): A(f'v_cvt_pk_bf16_f32 v{C3+j}, v{a0+8+2*j}, v{a0+9+2*j}')
    for j in range(4): A(f'v_cvt_pk_bf16_f32 v{S3+j}, v{a0+2*j}, v{a0+1+2*j}')
    for j in range(4): A(f'v_xor_b32 v{C3+4+j}, 0x80000000, v{C3+j}\nv_xor_b32 v{S3+4+j}, 0x80000000, v{S3+j}')
    for j in range(8): A(f'v_xor_b32 v{NS3+j}, s{sSGN}, v{S3+j}')
    TC,TS,UC,USn=64,72,80,88
    A(f's_lshl_b32 s20, s3, 4\nv_add_u32 v{t}, s20, v{N}\nv_cvt_f32_u32 v{t}, v{t}\nv_mul_f32 v{t}, {fh(1/2048)}, v{t}\nv_mul_f32 v{t+1}, v{t+2}, v{t}')
    for k in range(8): A(f'v_fmamk_f32 v{TS+k}, v{t}, {fh(float(16*(k>>2)+(k&3)))}, v{t+1}')
    for k in range(8): A(f'v_cos_f32 v{TC+k}, v{TS+k}')
    for k in range(8): A(f'v_sin_f32 v{TS+k}, v{TS+k}')
    A(f'v_cvt_f32_u32 v{t+3}, s20\nv_add_f32 v{t+2}, v{t+2}, v{t+3}')
    for nu in range(2):
        A(f'v_add_u32 v{t}, {16*nu}, v{N}\nv_cvt_f32_u32 v{t}, v{t}\nv_mul_f32 v{t}, {fh(1/2048)}, v{t}\nv_mul_f32 v{t+1}, v{t+2}, v{t}')
        for r in range(4): A(f'v_fmamk_f32 v{USn+4*nu+r}, v{t}, {fh(float(r))}, v{t+1}')
    for k in range(8): A(f'v_cos_f32 v{UC+k}, v{USn+k}')
    for k in range(8): A(f'v_sin_f32 v{USn+k}, v{USn+k}')
    A(f's_mov_b32 s28, {fh(1/(2048*288))}')
    for k in range(0,16,2): pkmul(A,UC+k,UC+k,28)
    A(f'v_lshlrev_b32 v4, 4, v0')
    A(f'v_mul_u32_u24 v5, {US}, v{N}\nv_lshl_add_u32 v6, v{G}, 4, v5\nv_lshl_add_u32 v5, v{G}, 3, v5\ns_lshl_b32 s20, s3, 5\nv_add_u32 v5, s20, v5')
    A(f'v_lshrrev_b32 v7, 1, v{G}\nv_lshl_add_u32 v7, v7, 5, v{N}\ns_lshl_b32 s20, s3, 6\nv_add_u32 v7, s20, v7\nv_mul_u32_u24 v7, 9216, v7')
    A(f'v_and_b32 v{t}, 1, v{G}\nv_mul_lo_u32 v{t}, v{t}, s21\nv_add_u32 v7, v7, v{t}')
    A(f's_add_u32 s22, s5, {WS_T if inplace else WS_Y}\ns_add_u32 s23, s22, {16*9216}')
    A('s_waitcnt vmcnt(2)\ns_barrier')
    ST()
    F=100
    for mu in range(2):
        for part in range(2):
            for tt in range(2): A(f'ds_read_b128 {v(F+16*mu+8*part+4*tt,4)}, v4 offset:{(2*mu+tt)*2048+part*1024}')
    AR,AI=132,140
    for mu in range(2):
        fr,fi=F+16*mu,F+16*mu+8
        A(f's_waitcnt lgkmcnt({4-4*mu})')
        for tt in range(2):
            mfma16(A,AR+4*mu,fr+4*tt,C+4*tt,tt==0); mfma16(A,AI+4*mu,fi+4*tt,C+4*tt,tt==0)
        for tt in range(2):
            mfma16(A,AR+4*mu,fi+4*tt,S+4*tt,False); mfma16(A,AI+4*mu,fr+4*tt,NS+4*tt,False)
    X,Y_=148,156
    def cmul(c,s_,conj):
        for k in range(0,8,2):
            A(f'v_pk_mul_f32 {pr(X+k)}, {pr(AR+k)}, {pr(c+k)}\nv_pk_mul_f32 {pr(Y_+k)}, {pr(AI+k)}, {pr(c+k)}')
        n1='[0,0,0]' if conj else '[1,0,0]'; n2='[1,0,0]' if conj else '[0,0,0]'
        for k in range(0,8,2):
            A(f'v_pk_fma_f32 {pr(X+k)}, {pr(AI+k)}, {pr(s_+k)}, {pr(X+k)} neg_lo:{n1} neg_hi:{n1}\nv_pk_fma_f32 {pr(Y_+k)}, {pr(AR+k)}, {pr(s_+k)}, {pr(Y_+k)} neg_lo:{n2} neg_hi:{n2}')
    BR,BI=100,104
    def pack():
        for j in range(4): A(f'v_cvt_pk_bf16_f32 v{BR+j}, v{X+2*j}, v{X+2*j+1}\nv_cvt_pk_bf16_f32 v{BI+j}, v{Y_+2*j}, v{Y_+2*j+1}')
    A('s_nop 7')
    cmul(TC,TS,True); pack()
    A('s_nop 1')
    for nu in range(2):
        mfma16(A,AR+4*nu,C3+4*nu,BR,True); mfma16(A,AI+4*nu,C3+4*nu,BI,True)
    for nu in range(2):
        mfma16(A,AR+4*nu,S3+4*nu,BI,False); mfma16(A,AI+4*nu,NS3+4*nu,BR,False)
    A('s_waitcnt vmcnt(0)')
    for j in range(4):
        A(f'v_lshlrev_b32 v{TC+2*j}, 16, v{WR+j}\nv_and_b32 v{TC+2*j+1}, s{sMASK}, v{WR+j}\nv_lshlrev_b32 v{TS+2*j}, 16, v{WI+j}\nv_and_b32 v{TS+2*j+1}, s{sMASK}, v{WI+j}')
    cmul(TC,TS,False); pack()
    A('s_nop 1')
    for nu in range(2):
        mfma16(A,AR+4*nu,BR,C3+4*nu,True); mfma16(A,AI+4*nu,BI,C3+4*nu,True)
    for nu in range(2):
        mfma16(A,AR+4*nu,BI,NS3+4*nu,False); mfma16(A,AI+4*nu,BR,S3+4*nu,False)
    A('s_nop 7')
    cmul(UC,USn,False); pack()
    for nu in range(2):
        A(f'ds_write_b64 v5, {v(BR+2*nu,2)} offset:{UB+nu*16*US}\nds_write_b64 v5, {v(BI+2*nu,2)} offset:{UB+32*US+nu*16*US}')
    A('s_waitcnt lgkmcnt(0)\ns_barrier')
    ST()
    for nu in range(2):
        for part in range(2):
            for tt in range(2): A(f'ds_read_b128 {v(F+16*nu+8*part+4*tt,4)}, v6 offset:{UB+part*32*US+nu*16*US+64*tt}')
    for nu in range(2):
        fr,fi=F+16*nu,F+16*nu+8
        A(f's_waitcnt lgkmcnt({4-4*nu})')
        for tt in range(2):
            mfma16(A,AR+4*nu,C+4*tt,fr+4*tt,tt==0); mfma16(A,AI+4*nu,C+4*tt,fi+4*tt,tt==0)
        for tt in range(2):
            mfma16(A,AR+4*nu,NS+4*tt,fi+4*tt,False); mfma16(A,AI+4*nu,S+4*tt,fr+4*tt,False)
    for nu in range(2):
        o=X+4*nu
        if nu==1: A('s_nop 1')
        A(f'v_cvt_pk_bf16_f32 v{o}, v{AR+4*nu}, v{AR+4*nu+1}\nv_cvt_pk_bf16_f32 v{o+1}, v{AR+4*nu+2}, v{AR+4*nu+3}')
        A(f'v_cvt_pk_bf16_f32 v{o+2}, v{AI+4*nu}, v{AI+4*nu+1}\nv_cvt_pk_bf16_f32 v{o+3}, v{AI+4*nu+2}, v{AI+4*nu+3}')
        A(f'v_xor_b32 v{o+2}, s27, v{o+2}\nv_xor_b32 v{o+3}, s27, v{o+3}')
        A(f's_nop 1\nv_permlane16_swap_b32 v{o}, v{o+2}\nv_permlane16_swap_b32 v{o+1}, v{o+3}')
        A(f'buffer_store_dwordx4 {v(o,4)}, v7, s[12:15], s{22+nu} offen {sm}')
    ST.finish(12,3)
    grid=gen_extra(A,name,289,plan,stamp,2,psm,lm)
    A(f'{name}_end:\ns_endpgm')
    return A.text(), kernel_desc(name,168,168), 36864, grid

def gen_k3(name='k3_kernel', stamp=False, layout='B16', plan=[('p',2)], sm='', lm='', xm='', inplace=False, psm='', rot=0):
    A=Asm(); ST=Stamps(A,stamp,3)
    RS=2304+16; TB=9216; IB=TB+8*RS
    if rot: A(f's_cmp_ge_u32 s2, {256+rot}\ns_cbranch_scc1 {name}_end\ns_sub_u32 s2, s2, {rot}\ns_cselect_b32 s3, {256+rot}, 0\ns_add_u32 s2, s2, s3')
    A(f's_cmp_ge_u32 s2, 256\ns_cbranch_scc1 {name}_pp')
    A('s_load_dwordx2 s[32:33], s[0:1], 0\ns_load_dwordx2 s[38:39], s[0:1], 72')
    ST.start()
    code_prefetch(A,name,1,159)
    A('v_lshrrev_b32 v1, 6, v0\nv_lshlrev_b32 v158, 4, v0\nv_readfirstlane_b32 s3, v1\nv_and_b32 v0, 63, v0')
    sMASK,sSGN,sINV=24,26,25
    A(f's_mov_b32 s{sMASK}, 0xffff0000\ns_mov_b32 s{sSGN}, 0x80008000\ns_mov_b32 s{sINV}, {fh(1/576)}')
    TID16=158
    A(f's_mul_i32 s6, s2, 9216\ns_add_u32 s6, s6, {WS_T if inplace else WS_Y}\ns_lshl_b32 s20, s3, 10')
    A('s_waitcnt lgkmcnt(0)')
    srd(A,8,32,33,2359296); srd(A,12,38,39,WS_BYTES)
    A(f's_mov_b32 m0, s20\ns_add_u32 s7, s6, 4096\nbuffer_load_dwordx4 v{TID16}, s[12:15], s6 offen lds')
    A(f's_add_u32 m0, s20, 4096\ns_nop 0\nbuffer_load_dwordx4 v{TID16}, s[12:15], s7 offen lds')
    A(f's_cmp_lg_u32 s3, 0\ns_cbranch_scc1 {name}_l1\ns_mov_b32 m0, 8192\ns_add_u32 s7, s6, 8192\nbuffer_load_dwordx4 v{TID16}, s[12:15], s7 offen lds\n{name}_l1:')
    Q,ROW=2,3; O=4
    A(f'v_and_b32 v{Q}, 31, v0\nv_lshrrev_b32 v{ROW}, 5, v0\ns_lshl_b32 s4, s3, 1\nv_add_u32 v{ROW}, s4, v{ROW}')
    rot_offsets(A,Q,O,14)
    A(f's_lshr_b32 s4, s2, 5\ns_lshl_b32 s4, s4, 8\ns_and_b32 s5, s2, 31\ns_add_u32 s4, s4, s5\ns_mul_i32 s4, s4, 1152')
    A(f'v_mul_u32_u24 v14, {32*1152}, v{ROW}\nv_lshl_add_u32 v14, v{Q}, 2, v14')
    X=16
    for j in range(9): A(f'v_add_u32 v15, v14, v{O+j}\nbuffer_load_dword v{X+j}, v15, s[8:11], s4 offen {xm}')
    ST()
    A(f'v_lshrrev_b32 v14, 2, v{Q}\nv_xor_b32 v15, v14, v{ROW}\nv_lshlrev_b32 v15, 4, v15\nv_lshl_add_u32 v15, v14, 7, v15\nv_and_b32 v14, 3, v{Q}\nv_lshl_add_u32 v15, v14, 2, v15\nv_add_u32 v15, {IB}, v15')
    for j in range(9): A(f'v_lshl_add_u32 v{O+j}, v{O+j}, 3, v15')
    C,S,NS=28,36,44
    const64(A,0,3,C,S,NS,100,sSGN)
    K=k9_load(A,48)
    C0,NS0=52,56
    for j in range(1,4): A(f'v_mov_b32 v{C0+j}, v{C+j}\nv_mov_b32 v{NS0+j}, v{NS+j}')
    A(f'v_and_b32 v14, s{sMASK}, v{C}\nv_or_b32 v14, 0x3f00, v14\nv_and_b32 v15, s{sMASK}, v{NS}\nv_and_b32 v13, 1, v0\nv_lshl_or_b32 v15, v13, 15, v15\nv_or_b32 v15, 0x3f00, v15')
    A(f'v_cmp_gt_u32 vcc, 16, v0\ns_nop 1\nv_cndmask_b32 v{C0}, v{C}, v14, vcc\nv_cndmask_b32 v{NS0}, v{NS}, v15, vcc')
    RA=60
    A('v_lshrrev_b32 v13, 4, v0\nv_bfe_u32 v14, v0, 2, 2\nv_lshl_add_u32 v13, v13, 3, v14\nv_mul_u32_u24 v13, 9, v13')
    A('v_and_b32 v14, 1, v0\nv_lshlrev_b32 v14, 3, v14')
    for q in range(2): A(f'v_add_u32 v15, {36*q}, v13\nv_lshl_add_u32 v{RA+8+q}, v15, 5, v14')
    A('v_bfe_u32 v15, v0, 1, 1\nv_lshl_add_u32 v13, v15, 6, v13')
    for mu in range(2):
        for t in range(2):
            for q in range(2):
                r=RA+4*mu+2*t+q
                A(f'v_add_u32 v{r}, {9*(32*t+4*q)+64*(1+2*mu)}, v13\nv_subrev_u32 v15, 576, v{r}\nv_min_u32 v{r}, v{r}, v15\nv_sub_u32 v15, 576, v{r}\nv_min_u32 v{r}, v{r}, v15\nv_lshl_add_u32 v{r}, v{r}, 5, v14')
    A(f'v_and_b32 v13, 7, v0\nv_mul_u32_u24 v72, {RS}, v13\nv_lshrrev_b32 v13, 4, v0\nv_lshl_add_u32 v72, v13, 4, v72\ns_lshl_b32 s21, s3, 6\ns_add_u32 s21, s21, {TB}\nv_add_u32 v72, s21, v72')
    A('v_bfe_u32 v13, v0, 3, 1\nv_lshl_add_u32 v70, v13, 9, v72')
    A(f'v_mul_u32_u24 v71, {RS}, v{ROW}\nv_lshl_add_u32 v71, v{Q}, 3, v71\nv_add_u32 v71, {TB}, v71')
    A(f'v_lshrrev_b32 v13, 7, v{TID16}\nv_bfe_u32 v14, v{TID16}, 4, 3\nv_and_b32 v15, 7, v13\nv_xor_b32 v14, v14, v15\nv_lshlrev_b32 v14, 4, v14')
    if layout=='A32':
        A('v_lshl_add_u32 v73, v13, 9, v14'); RND=32*512
        A('s_lshr_b32 s21, s2, 2\ns_mul_i32 s21, s21, 36864\ns_and_b32 s22, s2, 3\ns_lshl_b32 s22, s22, 7\ns_add_u32 s21, s21, s22')
    else:
        A('v_lshrrev_b32 v15, 2, v13\nv_lshl_add_u32 v14, v15, 11, v14\nv_and_b32 v15, 3, v13\nv_lshl_add_u32 v73, v15, 8, v14'); RND=8*2048
        A('s_lshr_b32 s21, s2, 2\ns_mul_i32 s21, s21, 36864\ns_bfe_u32 s22, s2, 0x10001\ns_lshl_b32 s22, s22, 10\ns_add_u32 s21, s21, s22\ns_and_b32 s22, s2, 1\ns_lshl_b32 s22, s22, 7\ns_add_u32 s21, s21, s22')
    A('s_waitcnt vmcnt(9)\ns_barrier')
    ST()
    F=100
    for mu in range(2):
        for part in range(2):
            for t in range(2):
                for q in range(2): A(f'ds_read_b64_tr_b16 {v(F+16*mu+8*part+4*t+2*q,2)}, v{RA+4*mu+2*t+q} offset:{16*part}')
        if mu==0: A('s_waitcnt lgkmcnt(3)')
    for part in range(2):
        for q in range(2): A(f'ds_read_b64_tr_b16 {v(F+32+4*part+2*q,2)}, v{RA+8+q} offset:{16*part}')
    ACC=76
    for mu in range(2):
        fr,fi=F+16*mu,F+16*mu+8
        A(f's_waitcnt lgkmcnt({12-8*mu})')
        for t in range(2):
            mfma16(A,ACC+8*mu,C+4*t,fr+4*t,t==0); mfma16(A,ACC+8*mu+4,C+4*t,fi+4*t,t==0)
        for t in range(2):
            mfma16(A,ACC+8*mu,NS+4*t,fi+4*t,False); mfma16(A,ACC+8*mu+4,S+4*t,fr+4*t,False)
    A('s_waitcnt lgkmcnt(0)')
    mfma16(A,ACC+16,C0,F+32,True); mfma16(A,ACC+16,NS0,F+36,False)
    for mu in range(2):
        if mu==1: A('s_nop 4')
        for part in range(2): A(f'ds_write_b128 v70, {v(ACC+8*mu+4*part,4)} offset:{(1+4*mu+part)*256}')
    A(f's_nop 4\nds_write_b128 v72, {v(ACC+16,4)}')
    A('s_waitcnt lgkmcnt(0)\ns_barrier')
    ST()
    TT=[100+2*sg for sg in range(9)]
    for sg in range(9): A(f'ds_read_b64 {pr(TT[sg])}, v71 offset:{sg*256}')
    U={b:118+2*b for b in range(5)}; V={b:126+2*b for b in range(1,5)}; T=136
    A('s_waitcnt lgkmcnt(0)')
    dft9_core(A,K,TT[0],{k:TT[2*k-1] for k in range(1,5)},{k:TT[2*k] for k in range(1,5)},U,V,(T,T+2,T+4),False)
    Yb={0:U[0]}
    for b in range(1,5):
        Yb[b]=TT[b]; Yb[9-b]=TT[9-b]
        pkadd(A,Yb[b],U[b],V[b],neg=True); pkadd(A,Yb[9-b],U[b],V[b])
    P=[28+2*b for b in range(9)]; D=[76+2*b for b in range(9)]
    for j in range(9): A(f'v_cvt_pk_bf16_f32 v{D[j]}, v{Yb[j]}, v{Yb[(j+1)%9]+1}')
    A('s_waitcnt vmcnt(0)')
    for j in range(9):
        A(f'v_and_b32 v{D[j]+1}, s{sMASK}, v{D[j]}\nv_lshlrev_b32 v{D[j]}, 16, v{D[j]}\nv_lshlrev_b32 v{P[j]}, 16, v{X+j}\nv_and_b32 v{P[j]+1}, s{sMASK}, v{X+j}')
    for j in range(9): pkadd(A,P[j],P[j],D[j])
    for j in range(9): A(f'v_cvt_pk_bf16_f32 v{X+j}, v{P[j]}, v{P[j]+1}')
    for j in range(9): A(f'ds_write_b32 v{O+j}, v{X+j}')
    for j in range(9): A(f'v_lshlrev_b32 v{P[j]}, 16, v{X+j}\nv_and_b32 v{P[j]+1}, s{sMASK}, v{X+j}')
    L=[100+j for j in range(9)]
    layernorm(A,P,D,T,sMASK,sINV,keep_packed=L,unpack=False)
    for j in range(9): A(f'ds_write_b32 v{O+j}, v{L[j]} offset:9216')
    A('s_waitcnt lgkmcnt(0)\ns_barrier')
    ST()
    for im in range(2):
        for rd in range(2): A(f'ds_read_b128 {v(28+8*im+4*rd,4)}, v{TID16} offset:{IB+im*9216+rd*4096}')
    A(f's_cmp_lg_u32 s3, 0\ns_cbranch_scc1 {name}_l2')
    for im in range(2): A(f'ds_read_b128 {v(44+4*im,4)}, v{TID16} offset:{IB+im*9216+8192}')
    A('s_waitcnt lgkmcnt(0)')
    for im,base in ((1,WS_L2F),(0,WS_H)):
        A(f's_add_u32 s22, s21, {base+2*RND}\nbuffer_store_dwordx4 {v(44+4*im,4)}, v73, s[12:15], s22 offen {sm}')
    A(f'{name}_l2:\ns_waitcnt lgkmcnt(0)')
    for im,base in ((1,WS_L2F),(0,WS_H)):
        for rd in range(2): A(f's_add_u32 s22, s21, {base+rd*RND}\nbuffer_store_dwordx4 {v(28+8*im+4*rd,4)}, v73, s[12:15], s22 offen {sm}')
    ST.finish(12,3)
    grid=gen_extra(A,name,256,plan,stamp,3,psm,lm)
    A(f'{name}_end:\ns_endpgm')
    return A.text(), kernel_desc(name,160,160), IB+2*9216, grid
```

```python
import sys; sys.path.insert(0,'dev')
from asmlib import *
from k4 import srd, WS_H, WS_L2F, WS_BYTES, WS_STAMP
WS_P=0x1400000
WS_HH=0x2000000
WS_S=0x3200000
WS_FL=0x4200000
WS_STAMP=0x4400000
SLEN=244*4096
PHS=[(0,4,9),(4,7,21),(7,9,30)]
E0=30
def eorder(delta):
    o=[(delta,t) for t in range(9)]
    for lo,hi,_ in PHS:
        for rho in range(3): o+=[((delta+1+rho)%4,t) for t in range(lo,hi)]
    return o
def order1():
    return [(b,i) for i in range(9) for b in range(2)]+[(b,i) for b in range(2,9) for i in range(9)]
def order2():
    return [(i,nu) for i in range(E0//2) for nu in range(9)]+[(i,nu) for nu in range(9) for i in range(E0//2,18)]

def gen_k4c(name='k4_kernel', B=2, B0=1, P0=5, stamp=False, dma=True, dovalu=True, nobar=False, R=10, fl=((-330,-290),(2,40),(330,370)), hh_mod='sc1', p_mod='', noflag=False, pubdelay=72, hlead=160, hurg=80, boost=0, hl_mod='sc1', xmap=0, dpause=(0,0), hrate=0, g0=(1,5,6), lord=1, hrateA=11):
    A=Asm()
    vRD=[2,3,4]; vS,vL2,vP,vHS,vFL=5,6,7,8,9
    vHL=[10,11,12]; vF=16; vT=20
    FR=24; NF=12; ACC=[72,104,216,72,104,216,72,104,216]; OA=[72,80,88,96,136,104,112,120,128]; HH=144; PK=216; PF=248
    sWS=8; sW4K,sTMP,sNL2E,sSO=28,29,30,31
    A(f's_cmp_ge_u32 s2, 256\ns_cbranch_scc1 {name}_end')
    A('s_load_dwordx2 s[38:39], s[0:1], 72')
    nst=[0]
    def do_stamp():
        if stamp:
            i=nst[0]; nst[0]+=1
            return [f's_memtime s[{58+2*i}:{59+2*i}]']
        return []
    for l in do_stamp(): A(l)
    if stamp: A('s_memrealtime s[92:93]')
    vm=[]
    A('v_lshrrev_b32 v1, 6, v0\nv_lshlrev_b32 v21, 7, v0\nv_readfirstlane_b32 s3, v1\nv_and_b32 v0, 63, v0')
    if xmap==0:
        A('s_bfe_u32 s4, s2, 0x20001\ns_bfe_u32 s5, s2, 0x20003\ns_and_b32 s6, s2, 1\ns_lshl_b32 s6, s6, 3\ns_lshr_b32 s7, s2, 5\ns_add_u32 s6, s6, s7')
    elif xmap==1:
        A('s_bfe_u32 s4, s2, 0x10002\ns_lshl_b32 s4, s4, 1\ns_bfe_u32 s7, s2, 0x10005\ns_add_u32 s4, s4, s7\ns_bfe_u32 s5, s2, 0x20003\ns_and_b32 s6, s2, 3\ns_lshl_b32 s6, s6, 2\ns_lshr_b32 s7, s2, 6\ns_add_u32 s6, s6, s7')
    else:
        A('s_bfe_u32 s4, s2, 0x20005\ns_bfe_u32 s5, s2, 0x20003\ns_and_b32 s6, s2, 7\ns_lshl_b32 s6, s6, 1\ns_lshr_b32 s7, s2, 7\ns_add_u32 s6, s6, s7')
    A('s_lshl_b32 s7, s4, 2\ns_add_u32 s7, s7, s5')
    A(f's_lshl_b32 s{sW4K}, s3, 12\nv_lshlrev_b32 v{vRD[0]}, 4, v0')
    A(f's_mul_i32 s44, s7, {SLEN}\ns_add_u32 s44, s44, s{sW4K}\ns_add_u32 s44, s44, {WS_S}\nv_add_u32 v{vS}, s44, v{vRD[0]}')
    A(f's_lshl_b32 s45, s6, 2\ns_add_u32 s45, s45, s3\ns_mul_i32 s45, s45, 36864\ns_add_u32 s44, s45, {WS_L2F}\nv_add_u32 v{vL2}, s44, v{vRD[0]}')
    A('s_getpc_b64 s[40:41]\ns_waitcnt lgkmcnt(0)')
    for l in do_stamp(): A(l)
    srd(A,sWS,38,39,WS_BYTES)
    mf=[]
    def quad(f0,acc,first,bops,need=None):
        for rt in range(2):
            for h in range(2):
                mf.append(dict(f=f0+h,acc=acc+4*rt,first=(first and h==0),bop=bops(h,rt),need=need))
    f=0
    for b,i in order1():
        for mat in range(2):
            for ph in range(2):
                quad(f,ACC[b]+16*mat+8*ph,i==0,lambda h,rt,i=i:a(8*(2*i+h)+4*rt,4),need=(('L',2*i+1) if b==0 else None)); f+=2
    PH2=len(mf)
    def areg(e): return 144+8*(e-9) if e<PHS[1][2] else 8*(e-PHS[1][2])
    def hop(e,rt): return v(HH+8*e+4*rt,4) if e<9 else a(areg(e)+4*rt,4)
    lastx={}; needx={}
    for i,nu in order2():
        needx.setdefault(i,len(mf))
        quad(f,OA[nu],i==0,lambda h,rt,i=i:hop(2*i+h,rt),need=('E',2*i+1)); f+=2; lastx[nu]=len(mf)-1
    NM=len(mf); NFR=f; NU=NFR//4; NS=(NU+3)//4
    assert NM==1944 and NU==243
    ops=[]
    for S in range(NS):
        for q in range(4):
            ops.append(('D',S,q))
            for z in range(lord):
                n=4*lord*S+lord*q+z
                if n<36: ops.append(('L',n>>1,n&1))
    def op_allowed(op): return op[0]!='D' or op[1]<R or op[1]-R<=free[0]
    def op_items(op):
        if op[0]=='D':
            S,q=op[1:]; pre=[]
            if q==0: pre=[f's_add_u32 m0, s{sW4K}, {(S%R)*16384}', f's_mov_b32 s{sSO}, {S*16384}']
            return pre,f'buffer_load_dwordx4 v{vS}, s[{sWS}:{sWS+3}], s{sSO} offen offset:{q*1024} lds'
        if op[0]=='L':
            k_,rt=op[1:]; n=2*k_+rt
            return ([f's_mov_b32 s{sTMP}, {(n>>2)*4096}'] if n%4==0 else []), f'buffer_load_dwordx4 {a(8*k_+4*rt,4)}, v{vL2}, s[{sWS}:{sWS+3}], s{sTMP} offen offset:{(n&3)*1024}'
    free=[-1]; k=[0]
    def skip(op): return (not dma) and op[0]=='D'
    while ops[k[0]][0]!='D' or ops[k[0]][1]<P0:
        op=ops[k[0]]; k[0]+=1
        if skip(op): continue
        pre,ins=op_items(op)
        for l in pre+[ins]: A(l)
        vm.append(op)
        if k[0]==6:
            A(f'v_min_u32 v22, {name}_end-{name}-256, v21\nglobal_load_dword v{PF}, v22, s[40:41]\nv_add_u32 v21, 0x8000, v21\nv_min_u32 v22, {name}_end-{name}-256, v21\nglobal_load_dword v{PF+1}, v22, s[40:41]'); vm+=[('pf',),('pf',)]
    A(f's_mov_b32 s{sNL2E}, 0xbfb8aa3b')
    A(f'v_add_u32 v{vRD[1]}, 0x10000, v{vRD[0]}\nv_add_u32 v{vRD[2]}, 0x20000, v{vRD[0]}')
    A(f's_mul_i32 s44, s4, 2359296\ns_add_u32 s44, s44, s45\ns_mul_i32 s46, s5, 9216\ns_add_u32 s44, s44, s46\ns_add_u32 s44, s44, {WS_P}\nv_add_u32 v{vP}, s44, v{vRD[0]}')
    A(f's_lshl_b32 s44, s6, 4\ns_lshl_b32 s46, s4, 2\ns_add_u32 s44, s44, s46\ns_lshl_b32 s44, s44, 2\ns_add_u32 s44, s44, s3\ns_mul_i32 s44, s44, 18432\ns_add_u32 s44, s44, {WS_HH}')
    A(f's_mul_i32 s46, s5, 73728\ns_add_u32 s46, s46, s44\nv_add_u32 v{vHS}, s46, v{vRD[0]}')
    for rho in range(3): A(f's_add_u32 s46, s5, {1+rho}\ns_and_b32 s46, s46, 3\ns_mul_i32 s46, s46, 73728\ns_add_u32 s46, s46, s44\nv_add_u32 v{vHL[rho]}, s46, v{vRD[0]}')
    A(f's_lshl_b32 s44, s6, 2\ns_add_u32 s44, s44, s4\ns_lshl_b32 s44, s44, 2\ns_add_u32 s44, s44, s3\ns_lshl_b32 s44, s44, 4\ns_add_u32 s44, s44, {WS_FL}\nv_mov_b32 v{vFL}, s44\ns_lshl_b32 s47, s5, 2\nv_mov_b32 v13, 1')
    lg=[]; done=[-1]
    def lgwait(pred):
        last=max([i for i,t in enumerate(lg) if pred(t)],default=-1)
        if last<=done[0]: return []
        n=len(lg)-1-last; assert n<=15; done[0]=last
        return [f's_waitcnt lgkmcnt({n})']
    vdone=[-1]
    def vmwait(pred):
        last=max([i for i,t in enumerate(vm) if pred(t)],default=-1)
        if last<=vdone[0]: return []
        n=len(vm)-1-last; vdone[0]=last
        return [] if n>=63 else [f's_waitcnt vmcnt({n})']
    gs=[]; S=0
    while S<NS:
        gs.append(S); S+=(B0 if S<9 else B)
    gend={g:(gs[i+1] if i+1<len(gs) else NS) for i,g in enumerate(gs)}
    def sync_for(fi):
        if fi%16 or (fi//16) not in gend: return []
        g=fi//16; out=[]
        while k[0]<len(ops) and any(o[0]=='D' and o[1]<gend[g] for o in ops[k[0]:]):
            op=ops[k[0]]; assert op_allowed(op); k[0]+=1
            if skip(op): continue
            pre,ins=op_items(op); out+=pre_pending(op,pre)+[ins]; vm.append(op)
        out+=vmwait(lambda t:t[0]=='D' and t[1]<gend[g])
        if not nobar: out.append('s_barrier')
        free[0]=(done[0]+1)//16-1
        return out
    pre_done={}
    def pre_pending(op,pre):
        n=pre_done.get(op,0)
        out=pre[n:]
        if out and out[-1].startswith('s_add_u32 m0'): out=out+['s_nop 0']
        return out
    def read(fi):
        S=fi//16; off=(S%R)*16384+(fi%16)*1024; r=FR+4*(fi%NF); lg.append(('F',fi))
        return f'ds_read_b128 v[{r}:{r+3}], v{vRD[off>>16]} offset:{off&0xffff}'
    HAZ=4
    chains=[]
    def add_chain(ops_,ready,dl,deps=(),tag=None):
        c=dict(ops=list(ops_),ready=ready,dl=dl,deps=list(deps),tag=tag,i=0); chains.append(c); return c
    for b in range(9):
        last=(279 if b==0 else 144*b+143); acc=ACC[b]; dl=(288+126*(b+1) if b<7 else (PH2+20 if b==7 else PH2+4*36))
        for rt in range(2):
            cv=[]
            for ph in range(2):
                g=acc+8*ph+4*rt; vals=[]
                for i in range(4):
                    r=g+i
                    o=[(f'v_mul_f32 v{r}, s{sNL2E}, v{r}',1),(f'v_exp_f32 v{r}, v{r}',2),(f'v_add_f32 v{r}, 1.0, v{r}',1),(f'v_rcp_f32 v{r}, v{r}',2),(f'v_mul_f32 v{r}, v{r}, v{r+16}',1)] if dovalu else []
                    vals.append(add_chain(o,last+HAZ,dl))
                for j in range(2):
                    cv.append(add_chain([(f'v_cvt_pk_bf16_f32 v{HH+8*b+4*rt+2*ph+j}, v{g+2*j}, v{g+2*j+1}',1)],last+HAZ,dl,deps=vals[2*j:2*j+2],tag=('hh',b)))
            add_chain([(f's_mov_b32 s{sTMP}, {b*2048}',1),(('V',('HS',b),f'buffer_store_dwordx4 {v(HH+8*b+4*rt,4)}, v{vHS}, s[{sWS}:{sWS+3}], s{sTMP} offen offset:{rt*1024} {hh_mod}'),2)],last+HAZ,dl+40,deps=cv,tag=('hs',b))
    for item in range(9):
        pk=PK+4*(item%3); cv=[]
        srcs=[(OA[2*(item>>1)+z]+4*(item&1)) for z in range(2)] if item<8 else [OA[8],OA[8]+4]
        rdy=lastx[2*(item>>1)+1 if item<8 else 8]+HAZ
        prev=[c for c in chains if c['tag']==('ps',item-3)]
        for z in range(2):
            for j in range(2): cv.append(add_chain([(f'v_cvt_pk_bf16_f32 v{pk+2*z+j}, v{srcs[z]+2*j}, v{srcs[z]+2*j+1}',1)],rdy,10**9,deps=prev))
        add_chain([(f's_mov_b32 s{sTMP}, {(item>>2)*4096}',1),(('V',('PS',item),f'buffer_store_dwordx4 {v(pk,4)}, v{vP}, s[{sWS}:{sWS+3}], s{sTMP} offen offset:{(item&3)*1024} {p_mod}'),2)],rdy,10**9,deps=cv,tag=('ps',item))
    hl=[]
    for e in range(9,36):
        for rt in range(2):
            ph=max(i for i,P in enumerate(PHS) if e>=P[2]); lo,hi_,e0=PHS[ph]
            hl.append((e,rt,(e-e0)//(hi_-lo),lo+(e-e0)%(hi_-lo),ph))
    hi=[0]; checked=[False]*3; published=[False]*3
    stmp_busy=[None]; stx={}; lasth=[0]
    def try_chain(x,cost,force=False):
        for c in chains:
            if c['i']>=len(c['ops']): continue
            if c['ready']>x and not force: continue
            if any(d['i']<len(d['ops']) or (d['ready']>x and not force) for d in c['deps']): continue
            t,cs=c['ops'][c['i']]
            if cs!=cost and not force: continue
            if isinstance(t,str) and t.startswith(f's_mov_b32 s{sTMP}'):
                if stmp_busy[0] is not None: continue
                stmp_busy[0]=c
            c['i']+=1; c['ready']=x+(2 if cs==2 else 1)
            if isinstance(t,tuple):
                vm.append(t[1]); stmp_busy[0]=None; return t[2]
            return t
        return None
    def pending(pred): return any(pred(c) and c['i']<len(c['ops']) for c in chains)
    def flag_store(ph):
        vm.append(('FS',ph)); published[ph]=True
        return f'buffer_store_dword v13, v{vFLp[ph]}, s[{sWS}:{sWS+3}], s47 offen sc1'
    vFLp=[vFL,14,15]
    A(f'v_add_u32 v14, 4096, v{vFL}\nv_add_u32 v15, 8192, v{vFL}')
    def flag_load(ph):
        vm.append(('FL',ph))
        return f'buffer_load_dwordx4 {v(vF,4)}, v{vFLp[ph]}, s[{sWS}:{sWS+3}], 0 offen sc1'
    def flag_check(ph):
        checked[ph]=True
        if noflag: return []
        L=f'{name}_f{ph}'
        return vmwait(lambda t:t==('FL',ph))+[f'{L}a:',f'v_and_b32 v{vT}, v{vF}, v{vF+1}',f'v_and_b32 v{vT+1}, v{vF+2}, v{vF+3}',f'v_and_b32 v{vT}, v{vT}, v{vT+1}',f'v_cmp_ne_u32 vcc, 0, v{vT}',f's_cbranch_vccnz {L}b',
                f'buffer_load_dwordx4 {v(vF,4)}, v{vFLp[ph]}, s[{sWS}:{sWS+3}], 0 offen sc1','s_waitcnt vmcnt(0)',f's_branch {L}a',f'{L}b:']
    for l in do_stamp(): A(l)
    rd=[0]
    for fi in range(8):
        for l in sync_for(fi)+[read(fi)]: A(l)
    rd[0]=8
    for l in do_stamp(): A(l)
    nforced=[0]; nover=[0]
    def nready(x,cost): return sum(1 for c in chains if c['i']<len(c['ops']) and c['ready']<=x and c['ops'][c['i']][1]==cost and not any(d['i']<len(d['ops']) or d['ready']>x for d in c['deps']))
    for x in range(NM):
        m=mf[x]; pre=[]
        while pending(lambda c:c['dl']<=x+1):
            t=try_chain(x,1,force=True); assert t; pre.append('s_nop 0'); pre.append(t); nforced[0]+=1
        if m['need'] and x%4==0:
            nk,ni=m['need']
            if nk=='L': pre+=vmwait(lambda t:t[0]=='L' and t[1]<=ni)
            elif ni>=9:
                assert any(t==('HL',ni,1) for t in vm),(x,ni)
                pre+=vmwait(lambda t:t[0]=='HL' and t[1]<=ni)
            if nk=='E': assert not pending(lambda c:c['tag'] in (('hh',ni),('hh',ni-1))),(x,ni)
        if x%8==0: pre+=lgwait(lambda t:t[1]<(x//8+1)*4)
        for l in pre: A(l)
        r=FR+4*(m['f']%NF); acc=v(m['acc'],4)
        A(f'v_mfma_f32_16x16x32_bf16 {acc}, v[{r}:{r+3}], {m["bop"]}, {"0" if m["first"] else acc}')
        if x in (63,143,287,431,863,PH2-1,PH2+143,PH2+323,PH2+539):
            for l in do_stamp(): A(l)
        gap=[]; g8=x%8; slots=2
        if g8==7: slots-=1
        tb=(x<288 or x>=PH2)
        for _ in range((2 if g8%4==0 else 0) if tb else (1 if g8%2==0 else 0)):
            if rd[0]<NFR:
                e=sync_for(rd[0]); gap+=e+[read(rd[0])]; rd[0]+=1; slots-=1+len(e)
        big=None
        if slots==2:
            hasL=any(o[0]=='L' for o in ops[k[0]:])
            want_dma=(g8==3) or (hasL and g8 in g0) or (x<boost and g8==5)
            if PH2+dpause[0]<=x<PH2+dpause[1]: want_dma=False
            for ph in range(3):
                if x==((PH2+fl[ph][0])&~7)+1: big=flag_load(ph)
                if x==((PH2+fl[ph][1])&~7)+1: assert published[ph],ph; gap+=flag_check(ph); slots=0
            if big is None and slots==2 and want_dma and k[0]<len(ops) and op_allowed(ops[k[0]]):
                op=ops[k[0]]; k[0]+=1
                if not skip(op):
                    pre_,ins=op_items(op)
                    if op[0]=='L' and pre_ : assert stmp_busy[0] is None
                    gap+=pre_pending(op,pre_); big=ins; vm.append(op)
            if big is None and slots==2:
                for ph,lastb in enumerate([P[1]-1 for P in PHS]):
                    idx=[i for i,t in enumerate(vm) if t==('HS',lastb)]
                    if len(idx)==2 and (ph,) not in stx: stx[(ph,)]=x
                    if not published[ph] and len(idx)==2 and x>=stx[(ph,)]+pubdelay:
                        gap+=vmwait(lambda t:t==('HS',lastb)); big=flag_store(ph); break
            singles=False
            hneed=needx[hl[hi[0]][0]//2] if hi[0]<len(hl) else 10**9
            if hi[0]<len(hl) and hl[hi[0]][4]==0: hneed=(x if checked[0] and x>=lasth[0]+hrateA else 10**9)
            elif x<PH2: hneed=10**9
            singles=(x>=PH2 and nready(x,1)>=2 and nready(x,2)<=2)
            if big is None and slots==2 and x<hneed-hurg and not singles: big=try_chain(x,2)
            if big is None and slots==2 and hi[0]<len(hl) and checked[hl[hi[0]][4]] and x>=hneed-hlead and (x>=lasth[0]+hrate or x>=hneed-hurg//2):
                lasth[0]=x
                e,rt,rho,tau,ph=hl[hi[0]]; hi[0]+=1; vm.append(('HL',e,rt))
                if rt==0: gap.append(f's_mov_b32 s48, {tau*2048}')
                big=f'buffer_load_dwordx4 {a(areg(e)+4*rt,4)}, v{vHL[rho]}, s[{sWS}:{sWS+3}], s48 offen offset:{rt*1024} {hl_mod}'
            if big is None and slots==2 and not singles: big=try_chain(x,2)
            if big is not None: gap.append(big); slots=0
        if slots==1 and x<PH2+20:
            cand=[c for c in chains if c['i']<len(c['ops']) and c['dl']<10**8]
            if cand:
                dl=min(c['dl'] for c in cand); rem=sum(1 for c in cand if c['dl']==dl for o in c['ops'][c['i']:] if o[1]==2)
                if rem>1.75*(dl-x-8)/8 or nready(x,1)==0 and rem>1.5*(dl-x-8)/8:
                    t=try_chain(x,2)
                    if t: gap.append(t); slots=0; nover[0]+=1
        while slots>0:
            if k[0]<len(ops) and ops[k[0]][0]=='D' and ops[k[0]][2]==0 and not skip(ops[k[0]]) and op_allowed(ops[k[0]]) and pre_done.get(ops[k[0]],0)<2 and g8 in (0,1,2,6,7) and not (PH2+dpause[0]<=x<PH2+dpause[1]-8):
                n=pre_done.get(ops[k[0]],0); gap.append(op_items(ops[k[0]])[0][n]); pre_done[ops[k[0]]]=n+1; slots-=1; continue
            t=try_chain(x,1)
            if t is None: break
            gap.append(t); slots-=1
        for l in gap: A(l)
    A('s_nop 7')
    while pending(lambda c:True):
        t=try_chain(10**8,1,force=True); A(t)
    assert k[0]==len(ops) and hi[0]==len(hl)
    print('forced',nforced[0],'over',nover[0],file=sys.stderr)
    if stamp:
        for l in do_stamp(): A(l)
        A('s_waitcnt vmcnt(0)')
        for l in do_stamp(): A(l)
        A('s_memrealtime s[90:91]\ns_waitcnt lgkmcnt(0)')
        for i in range(nst[0]): A(f'v_writelane_b32 v17, s{58+2*i}, {i}')
        A(f'v_writelane_b32 v17, s90, 31\nv_writelane_b32 v17, s92, 30')
        A(f's_lshl_b32 s44, s2, 2\ns_add_u32 s44, s44, s3\ns_lshl_b32 s44, s44, 8\ns_add_u32 s44, s44, {WS_STAMP}\nv_lshlrev_b32 v18, 2, v0')
        A(f'buffer_store_dword v17, v18, s[{sWS}:{sWS+3}], s44 offen')
    A(f'{name}_end:\ns_endpgm')
    return A.text(), kernel_desc(name,256+240,256)

def gen_k5c(name='k5_kernel'):
    A=Asm()
    A(f's_cmp_ge_u32 s2, 576\ns_cbranch_scc1 {name}_end')
    A('s_load_dwordx2 s[4:5], s[0:1], 56\ns_load_dwordx2 s[6:7], s[0:1], 72')
    A('v_lshrrev_b32 v2, 6, v0\ns_lshl_b32 s3, s2, 12\nv_readfirstlane_b32 s21, v2\nv_lshlrev_b32 v1, 4, v0\nv_add_u32 v1, s3, v1')
    A('s_mul_i32 s17, s2, 7282\ns_lshr_b32 s17, s17, 16')
    A('s_mul_i32 s18, s17, 9\ns_sub_u32 s18, s2, s18\ns_lshl_b32 s18, s18, 2\ns_add_u32 s18, s18, s21')
    A('s_mul_i32 s19, s18, 7282\ns_lshr_b32 s19, s19, 16\ns_mul_i32 s22, s19, 9\ns_sub_u32 s22, s18, s22')
    A('s_waitcnt lgkmcnt(0)')
    srd(A,8,6,7,WS_BYTES); srd(A,12,4,5,2359296)
    for f in range(4):
        A(f's_mov_b32 s16, {WS_P+f*2359296}\nbuffer_load_dwordx4 v[{8+4*f}:{11+4*f}], v1, s[8:11], s16 offen')
    A('v_bfe_u32 v5, v0, 4, 1\nv_bfe_u32 v6, v0, 5, 1\ns_and_b32 s23, s22, 1\ns_cmp_eq_u32 s22, 8\ns_cselect_b64 vcc, -1, 0')
    A('v_lshl_add_u32 v4, v5, 1, v6\nv_mov_b32 v3, s23\nv_cndmask_b32 v4, v4, v6, vcc\nv_cndmask_b32 v3, v3, v5, vcc')
    A('s_lshr_b32 s23, s22, 1\ns_lshl_b32 s23, s23, 2\ns_mul_i32 s24, s19, 18\ns_add_u32 s23, s23, s24\nv_add_u32 v4, s23, v4')
    A('v_lshrrev_b32 v5, 2, v4\nv_lshlrev_b32 v5, 11, v5\nv_lshl_add_u32 v5, v3, 10, v5\nv_and_b32 v6, 3, v4\nv_lshl_add_u32 v5, v6, 8, v5\nv_and_b32 v6, 15, v0\nv_lshl_add_u32 v5, v6, 4, v5')
    A(f's_mul_i32 s16, s17, 36864\ns_add_u32 s16, s16, {WS_H}\nbuffer_load_dwordx4 v[24:27], v5, s[8:11], s16 offen')
    A('v_bfe_u32 v6, v0, 3, 1\nv_lshl_add_u32 v3, v3, 1, v6\ns_lshl_b32 s19, s17, 2\nv_add_u32 v3, s19, v3')
    A('v_and_b32 v2, 7, v0\nv_lshlrev_b32 v2, 5, v2\nv_and_b32 v6, 31, v3\nv_add_u32 v2, v2, v6\nv_lshrrev_b32 v3, 5, v3\nv_lshl_add_u32 v2, v3, 8, v2')
    A('v_mul_u32_u24 v2, 1152, v2\nv_lshl_add_u32 v2, v4, 4, v2')
    A('s_mov_b32 s20, 0xffff0000')
    for f in range(4):
        A(f's_waitcnt vmcnt({4-f})')
        for j in range(4):
            r=8+4*f+j
            if f==0: A(f'v_lshlrev_b32 v{32+2*j}, 16, v{r}\nv_and_b32 v{33+2*j}, s20, v{r}')
            else: A(f'v_lshlrev_b32 v28, 16, v{r}\nv_and_b32 v29, s20, v{r}\nv_pk_add_f32 v[{32+2*j}:{33+2*j}], v[{32+2*j}:{33+2*j}], v[28:29]')
    for j in range(4): A(f'v_cvt_pk_bf16_f32 v{8+j}, v{32+2*j}, v{33+2*j}')
    A('s_nop 1\nv_permlane16_swap_b32 v8, v10\nv_permlane16_swap_b32 v9, v11\ns_waitcnt vmcnt(0)')
    for j in range(4):
        A(f'v_lshlrev_b32 v28, 16, v{8+j}\nv_and_b32 v29, s20, v{8+j}\nv_lshlrev_b32 v30, 16, v{24+j}\nv_and_b32 v31, s20, v{24+j}')
        A(f'v_pk_add_f32 v[28:29], v[28:29], v[30:31]\nv_cvt_pk_bf16_f32 v{12+j}, v28, v29')
    A('buffer_store_dwordx4 v[12:15], v2, s[12:15], 0 offen')
    A(f'{name}_end:\ns_endpgm')
    return A.text(), kernel_desc(name,40,40,sgpr=32)

def host_streams(wg,wu,wd):
    import numpy as np
    S=np.zeros((16,244*4,64,8),dtype=np.uint16)
    l=np.arange(64); m=(l&15)[:,None]; G=(l>>4)[:,None]; kk=np.arange(8)[None,:]
    for fs in range(16):
        f=0
        for b,i in order1():
            for W in (wg,wu):
                for ph in range(2):
                    for h in range(2):
                        S[fs,f]=W[32*(2*i+h)+8*G+kk, 288*fs+32*b+16*ph+m]; f+=1
        ga,de=fs>>2,fs&3; o=eorder(de)
        for i,nu in order2():
            for h in range(2):
                sg,tau=o[2*i+h]
                S[fs,f]=wd[288*(4*ga+sg)+32*tau+16*(kk>>2)+4*G+(kk&3), 144*de+16*nu+m]; f+=1
    return S

if __name__=='__main__':
    import json
    cfgs=json.loads(sys.argv[1])
    for fn,kw in cfgs.items():
        b4,d4=gen_k4c(**kw); b5,d5=gen_k5c()
        open(f'dev/{fn}.s','w').write(assemble_file([('k4_kernel',256,256,163840),('k5_kernel',576,256,0)],[('k4_kernel',b4),('k5_kernel',b5)],[d4,d5]))
```

```python
import sys
ST=0x4400000
def variant(s,kind,K):
    t=s
    t=t.replace("    s_load_dwordx4 s[40:43], s[0:1], 64\n","    s_load_dwordx4 s[40:43], s[0:1], 64\n    s_memrealtime s[92:93]\n",1)
    t=t.replace("kg_kernel_b2:\n","kg_kernel_b2:\n    s_memrealtime s[90:91]\n",1)
    i=t.index("    s_endpgm\nkg_kernel_ms:")
    t=t[:i]+f"""    s_or_b32 s20, s2, s3
    s_cmp_lg_u32 s20, 0
    s_cbranch_scc1 kg_kernel_end
    s_memrealtime s[88:89]
    s_waitcnt lgkmcnt(0)
    v_mov_b32 v2, s92
    v_mov_b32 v3, s90
    v_mov_b32 v4, s88
    s_mov_b32 s20, {ST}
    buffer_store_dwordx3 v[2:4], off, s[12:15], s20
"""+t[i:]
    t=t.replace("    s_load_dwordx2 s[38:39], s[0:1], 72\n    s_load_dwordx2 s[36:37], s[0:1], 56\n","    s_load_dwordx2 s[38:39], s[0:1], 72\n    s_memrealtime s[92:93]\n    s_load_dwordx2 s[36:37], s[0:1], 56\n",1)
    t=t.replace("k4_kernel_fcb:\n","k4_kernel_fcb:\n    s_memrealtime s[86:87]\n",1)
    expr={'front':"s_sub_u32 s22, s92, s60",'k4':"s_sub_u32 s22, s90, s92",'go':"s_sub_u32 s22, s61, s60",'all':"s_sub_u32 s22, s90, s60",'pro':"s_sub_u32 s22, s86, s60"}[kind]
    j=t.index("k4_kernel_end:")
    t=t[:j]+f"""    s_or_b32 s20, s2, s3
    s_cmp_lg_u32 s20, 0
    s_cbranch_scc1 k4_kernel_end
    s_memrealtime s[90:91]
    s_mov_b32 s20, {ST}
    buffer_load_dwordx3 v[2:4], off, s[8:11], s20
    s_waitcnt vmcnt(0) lgkmcnt(0)
    v_readfirstlane_b32 s60, v2
    v_readfirstlane_b32 s61, v3
    v_readfirstlane_b32 s62, v4
    s_nop 4
    {expr}
    s_min_u32 s22, s22, 10000
    s_mul_i32 s22, s22, {K}
k4_kernel_dl:
    s_memrealtime s[88:89]
    s_waitcnt lgkmcnt(0)
    s_sub_u32 s21, s88, s90
    s_cmp_lt_u32 s21, s22
    s_cbranch_scc1 k4_kernel_dl
"""+t[j:]
    return t
kind,K=sys.argv[1],int(sys.argv[2])
for n in sys.argv[3:]: open(f'dev/{n}_m.s','w').write(variant(open(f'dev/{n}.s').read(),kind,K))
```
